```python
import torch

def _softmax(x, axis=-1):
    return torch.softmax(x, dim=axis)
def _gelu(x):
    return torch.nn.functional.gelu(x, approximate="tanh")
def _silu(x):
    return torch.nn.functional.silu(x)
def _sigmoid(x):
    return torch.sigmoid(x)
def _layernorm(x, axis=-1, eps=1e-5):
    m = x.mean(dim=axis, keepdim=True)
    v = x.var(dim=axis, keepdim=True, unbiased=False)
    return (x - m) / torch.sqrt(v + eps)
def _scatter_add(tgt, idx, src, axis=0):
    return tgt.clone().index_add_(axis, idx, src)
def _segment_sum(src, seg, n):
    out = torch.zeros((n,) + src.shape[1:], dtype=src.dtype)
    return out.index_add_(0, seg, src)
def _pad(x, pw):
    flat = tuple(v for pair in reversed(pw) for v in pair)
    return torch.nn.functional.pad(x, flat)

kernel_name = 'concat_heads__sliding_local_dilated__mha_block__prompt'

def setup_inputs():

    _w = (lambda a: (lambda t: t.to(torch.bfloat16) if t.is_floating_point() else t)(torch.as_tensor(a)))
    def _A_setup():
        B, S, D = 1, 2048, 640
        return {
            "x": _w((lambda *s: torch.randn(*s, dtype=torch.bfloat16) * 0.4)(B, S, D)),
            "wqkv": _w((lambda *s: torch.randn(*s, dtype=torch.bfloat16) * 0.4)(D, 3 * D)),
            "wo": _w((lambda *s: torch.randn(*s, dtype=torch.bfloat16) * 0.05)(D, D)),
        }
    _A_in = _A_setup()

    def _B_setup():
        B, S, D, H = 1, 2048, 640, 32
        return {
            "x": _w((lambda *s: torch.randn(*s, dtype=torch.bfloat16) * 0.2)(B, S, D)),
            "wqkv": _w((lambda *s: torch.randn(*s, dtype=torch.bfloat16) * 0.4)(D, 3 * D)),
            "wo": _w((lambda *s: torch.randn(*s, dtype=torch.bfloat16) * 0.1)(D, D)),
        }
    _B_in = _B_setup()

    return {
        "A_x": _A_in["x"],
        "A_wqkv": _A_in["wqkv"],
        "A_wo": _A_in["wo"],
        "B_x": _B_in["x"],
        "B_wqkv": _B_in["wqkv"],
        "B_wo": _B_in["wo"],
    }

def reference(A_x, A_wqkv, A_wo, B_x, B_wqkv, B_wo):
    def _A_ref(x, wqkv, wo):
        B, S, D = x.shape
        H = 32; Dh = D // H
        W, dil = 8, 2
        qkv = (lambda x, *d: x.permute(*d))((x @ wqkv).reshape(B, S, 3, H, Dh), 2, 0, 3, 1, 4)
        q, k, v = qkv[0], qkv[1], qkv[2]
        scale = Dh ** -0.5
        pos = torch.arange(S)
        off = torch.arange(W) * dil
        idx = pos[:, None] - off[None, :]
        mask = idx >= 0
        idx_c = torch.where(mask, idx, 0).reshape(-1)
        kg = k[:, :, idx_c, :].reshape(B, H, S, W, Dh)
        vg = v[:, :, idx_c, :].reshape(B, H, S, W, Dh)
        logits = torch.einsum("bhsd,bhswd->bhsw", q, kg) * scale
        logits = torch.where(mask[None, None, :, :], logits, -1e9)
        attn = _softmax(logits, axis=-1)
        o = torch.einsum("bhsw,bhswd->bhsd", attn, vg)
        return (lambda x, *d: x.permute(*d))(o, 0, 2, 1, 3).reshape(B, S, D) @ wo

    def _B_ref(x, wqkv, wo):
        B, S, D = x.shape
        H = 32
        Dh = D // H
        qkv = (lambda x, *d: x.permute(*d))((x @ wqkv).reshape(B, S, 3, H, Dh), 2, 0, 3, 1, 4)
        q, k, v = qkv[0], qkv[1], qkv[2]
        scores = torch.einsum("bhqd,bhkd->bhqk", q, k) * (Dh ** -0.5)
        p = _softmax(scores, axis=-1)
        o = torch.einsum("bhqk,bhkd->bhqd", p, v)
        return (lambda x, *d: x.permute(*d))(o, 0, 2, 1, 3).reshape(B, S, D) @ wo

    a = _A_ref(A_x, A_wqkv, A_wo)
    b = _B_ref(B_x, B_wqkv, B_wo)
    return torch.concatenate([a, b], axis=-1)
```

```python
import math, sys

NAME = "concat_heads__sliding_local_dilated__mha_block__prompt"
L = []
def A(s): L.append("    " + s)
def lab(s): L.append(s + ":")
def C(s): L.append("    ; " + s)

TILE_B = 1536
HEAD_B = 64 * TILE_B
REG_Q, REG_K, REG_V, REG_O = 0, 0x300000, 0x600000, 0x900000
BR_SHIFT = 24
CSCALE = (20 ** -0.5) * math.log2(math.e)
import struct
def f2u(x): return struct.unpack("<I", struct.pack("<f", x))[0]

def vr(b, n): return f"v[{b}:{b+n-1}]"
def sr(b, n): return f"s[{b}:{b+n-1}]"

def kernel_header(name):
    L.append(".p2align 8")
    L.append(f".globl {name}")
    L.append(f".type {name},@function")
    lab(name)

DESC = []
def kernel_desc(name, nv, ns):
    nv4 = (nv + 3) // 4 * 4
    DESC.append(f""".amdhsa_kernel {name}
  .amdhsa_next_free_vgpr {nv}
  .amdhsa_next_free_sgpr {ns}
  .amdhsa_accum_offset {nv4}
  .amdhsa_group_segment_fixed_size 0
  .amdhsa_kernarg_size 72
  .amdhsa_user_sgpr_count 2
  .amdhsa_user_sgpr_kernarg_segment_ptr 1
  .amdhsa_system_sgpr_workgroup_id_x 1
.end_amdhsa_kernel""")

def gemm(kind, name):
    BM = 128 if kind == "qkv" else 64
    NXF = BM // 64
    XB = BM * 128
    WB = 64 * 256
    STG = XB + WB
    XI = BM // 32
    wstride = 3840 if kind == "qkv" else 1280
    nwg = 480 if kind == "qkv" else 320
    P = name[:3]
    sBR, sMT, sNT, sWV = 22, 23, 24, 25
    sXS, sWS, sOS = 28, 32, 36
    sX, sW = 40, 44
    sMX, sMW, sCNT, sT0, sT1, sWM, sWN = 48, 49, 50, 51, 52, 53, 54
    vXE, vXO, vWs = 1, 2, 3
    vXrd = 4
    vWrd = 8
    vT = 10
    vXf = 16
    vWf = vXf + 2 * NXF * 4
    vAcc = vWf + 16
    nacc = NXF * 2 * 16
    vE = vAcc + nacc
    NV = vE + 24

    kernel_header(name)
    A(f"s_cmp_ge_u32 s2, {nwg}")
    A(f"s_cbranch_scc1 {P}_end")
    A("s_load_dwordx16 s[4:19], s[0:1], 0")
    A("s_load_dwordx2 s[20:21], s[0:1], 64")
    A("s_and_b32 s26, s2, 7")
    A("s_lshr_b32 s27, s2, 3")
    A(f"s_lshr_b32 s{sBR}, s26, 2")
    A("s_and_b32 s26, s26, 3")
    if kind == "qkv":
        A("s_lshl_b32 s26, s26, 2")
        A(f"s_and_b32 s{sMT}, s27, 3")
        A(f"s_add_u32 s{sMT}, s{sMT}, s26")
        A(f"s_lshr_b32 s{sNT}, s27, 2")
    else:
        A("s_lshl_b32 s26, s26, 3")
        A(f"s_and_b32 s{sMT}, s27, 7")
        A(f"s_add_u32 s{sMT}, s{sMT}, s26")
        A(f"s_lshr_b32 s{sNT}, s27, 3")
    A("v_lshrrev_b32 v1, 6, v0")
    A("v_and_b32 v0, 63, v0")
    A(f"v_readfirstlane_b32 s{sWV}, v1")
    A("s_waitcnt lgkmcnt(0)")
    A(f"s_lshr_b32 s{sWM}, s{sWV}, 1")
    A(f"s_and_b32 s{sWN}, s{sWV}, 1")
    A(f"s_lshl_b32 s{sT0}, s{sBR}, {BR_SHIFT}")
    A(f"s_cmp_eq_u32 s{sBR}, 0")
    if kind == "qkv":
        A(f"s_cselect_b32 s{sXS}, s4, s10")
        A(f"s_cselect_b32 s{sXS+1}, s5, s11")
        A(f"s_cselect_b32 s{sWS}, s6, s12")
        A(f"s_cselect_b32 s{sWS+1}, s7, s13")
        A(f"s_add_u32 s{sOS}, s20, s{sT0}")
        A(f"s_addc_u32 s{sOS+1}, s21, 0")
        A(f"s_mov_b32 s{sXS+2}, 2621440")
        A(f"s_mov_b32 s{sWS+2}, 2457600")
        A(f"s_mov_b32 s{sOS+2}, 0x900000")
    else:
        A(f"s_cselect_b32 s{sWS}, s8, s14")
        A(f"s_cselect_b32 s{sWS+1}, s9, s15")
        A(f"s_add_u32 s{sT0}, s{sT0}, {REG_O}")
        A(f"s_add_u32 s{sXS}, s20, s{sT0}")
        A(f"s_addc_u32 s{sXS+1}, s21, 0")
        A(f"s_mov_b32 s{sOS}, s16")
        A(f"s_mov_b32 s{sOS+1}, s17")
        A(f"s_mov_b32 s{sXS+2}, 2621440")
        A(f"s_mov_b32 s{sWS+2}, 819200")
        A(f"s_mov_b32 s{sOS+2}, 5242880")
    for s in (sXS, sWS, sOS):
        A(f"s_and_b32 s{s+1}, s{s+1}, 0xffff")
        A(f"s_mov_b32 s{s+3}, 0x00020000")
    A(f"v_lshrrev_b32 v{vT}, 3, v0")
    A(f"v_mul_u32_u24 v{vXE}, 1280, v{vT}")
    A(f"v_and_b32 v{vT}, 7, v0")
    A(f"v_lshrrev_b32 v{vT+1}, 4, v0")
    A(f"v_xor_b32 v{vT}, v{vT}, v{vT+1}")
    A(f"v_lshl_add_u32 v{vXE}, v{vT}, 4, v{vXE}")
    A(f"v_xor_b32 v{vXO}, 64, v{vXE}")
    A(f"v_mul_u32_u24 v{vWs}, {wstride}, v{vT+1}")
    A(f"v_bfe_u32 v{vT}, v0, 2, 2")
    A(f"v_xor_b32 v{vT}, v{vT}, v{vT+1}")
    A(f"v_lshl_add_u32 v{vWs}, v{vT}, 6, v{vWs}")
    A(f"v_and_b32 v{vT}, 3, v0")
    A(f"v_lshl_add_u32 v{vWs}, v{vT}, 4, v{vWs}")
    A(f"s_mul_i32 s{sT0}, s{sMT}, {BM*1280}")
    A(f"s_mul_i32 s{sT1}, s{sWV}, {XI*8*1280}")
    A(f"s_add_u32 s{sX}, s{sT0}, s{sT1}")
    for j in range(1, XI):
        A(f"s_add_u32 s{sX+j}, s{sX}, {j*8*1280}")
    A(f"s_lshl_b32 s{sT0}, s{sNT}, 8")
    A(f"s_mul_i32 s{sT1}, s{sWV}, {16*wstride}")
    A(f"s_add_u32 s{sW}, s{sT0}, s{sT1}")
    for j in range(1, 4):
        A(f"s_add_u32 s{sW+j}, s{sW}, {j*4*wstride}")
    A(f"s_mul_i32 s{sMX}, s{sWV}, {XI*1024}")
    A(f"s_lshl_b32 s{sMW}, s{sWV}, 12")
    A(f"s_add_u32 s{sMW}, s{sMW}, {XB}")

    def issue(buf):
        for j in range(XI):
            A(f"s_add_u32 m0, s{sMX}, {buf*STG + j*1024}")
            A("s_nop 0")
            A(f"buffer_load_dwordx4 v{vXE if j%2==0 else vXO}, {sr(sXS,4)}, s{sX+j} offen lds")
        for j in range(4):
            A(f"s_add_u32 m0, s{sMW}, {buf*STG + j*1024}")
            A("s_nop 0")
            A(f"buffer_load_dwordx4 v{vWs}, {sr(sWS,4)}, s{sW+j} offen lds")
        for j in range(XI):
            A(f"s_add_u32 s{sX+j}, s{sX+j}, 128")
        for j in range(4):
            A(f"s_add_u32 s{sW+j}, s{sW+j}, {64*wstride}")

    issue(0)
    A(f"v_and_b32 v{vT}, 31, v0")
    A(f"s_mul_i32 s{sT0}, s{sWM}, {BM//2}")
    A(f"v_add_u32 v{vT}, s{sT0}, v{vT}")
    A(f"v_lshlrev_b32 v{vT}, 7, v{vT}")
    A(f"v_bfe_u32 v{vT+1}, v0, 1, 3")
    A(f"v_lshrrev_b32 v{vT+2}, 5, v0")
    for ks in range(4):
        A(f"v_add_u32 v{vT+3}, {2*ks}, v{vT+2}")
        A(f"v_xor_b32 v{vT+3}, v{vT+3}, v{vT+1}")
        A(f"v_lshl_add_u32 v{vXrd+ks}, v{vT+3}, 4, v{vT}")
    A(f"v_bfe_u32 v{vT}, v0, 2, 2")
    A(f"v_lshl_add_u32 v{vT+1}, v{vT+2}, 3, v{vT}")
    A(f"v_lshlrev_b32 v{vT+1}, 8, v{vT+1}")
    A(f"v_add_u32 v{vT+1}, {XB}, v{vT+1}")
    A(f"v_bfe_u32 v{vT+3}, v0, 4, 1")
    A(f"v_lshl_add_u32 v{vT+1}, v{vT+3}, 5, v{vT+1}")
    A(f"v_and_b32 v{vT+3}, 3, v0")
    A(f"v_lshl_add_u32 v{vT+1}, v{vT+3}, 3, v{vT+1}")
    A(f"s_lshl_b32 s{sT0}, s{sWN}, 1")
    for fi in range(2):
        A(f"s_add_u32 s{sT1}, s{sT0}, {fi}")
        A(f"v_xor_b32 v{vT+3}, s{sT1}, v{vT}")
        A(f"v_lshl_add_u32 v{vWrd+fi}, v{vT+3}, 6, v{vT+1}")
    for r in range(nacc):
        A(f"v_mov_b32 v{vAcc+r}, 0")
    A(f"s_mov_b32 s{sCNT}, 0")

    def acc(xi, fi): return vAcc + (xi * 2 + fi) * 16
    def reads(buf, ks, st):
        for xi in range(NXF):
            A(f"ds_read_b128 {vr(vXf+(st*NXF+xi)*4,4)}, v{vXrd+ks} offset:{buf*STG + xi*4096}")
        for fi in range(2):
            for i in range(2):
                A(f"ds_read_b64_tr_b16 {vr(vWf+(st*2+fi)*4+2*i,2)}, v{vWrd+fi} offset:{buf*STG + ks*4096 + i*1024}")
    nrd = NXF + 4
    def compute(buf, vorient):
        reads(buf, 0, 0)
        for ks in range(4):
            st = ks & 1
            if ks < 3:
                reads(buf, ks + 1, st ^ 1)
                A(f"s_waitcnt lgkmcnt({nrd})")
            else:
                A("s_waitcnt lgkmcnt(0)")
            for xi in range(NXF):
                for fi in range(2):
                    x = vr(vXf + (st * NXF + xi) * 4, 4)
                    w = vr(vWf + (st * 2 + fi) * 4, 4)
                    a = vr(acc(xi, fi), 16)
                    if vorient:
                        A(f"v_mfma_f32_32x32x16_bf16 {a}, {x}, {w}, {a}")
                    else:
                        A(f"v_mfma_f32_32x32x16_bf16 {a}, {w}, {x}, {a}")

    def mainloop(tag, vorient):
        lab(f"{P}_loop{tag}")
        for half in range(2):
            A("s_waitcnt vmcnt(0)")
            A("s_barrier")
            if half == 0:
                issue(1)
            else:
                A(f"s_cmp_eq_u32 s{sCNT}, 4")
                A(f"s_cbranch_scc1 {P}_skip{tag}")
                issue(0)
                lab(f"{P}_skip{tag}")
            compute(half, vorient)
        A(f"s_add_u32 s{sCNT}, s{sCNT}, 1")
        A(f"s_cmp_lt_u32 s{sCNT}, 5")
        A(f"s_cbranch_scc1 {P}_loop{tag}")
        A("s_nop 15")

    if kind == "out":
        mainloop("", False)
        A(f"v_and_b32 v{vT}, 31, v0")
        A(f"v_mul_u32_u24 v{vT}, 2560, v{vT}")
        A(f"v_lshrrev_b32 v{vT+1}, 5, v0")
        A(f"v_lshl_add_u32 v{vT}, v{vT+1}, 3, v{vT}")
        A(f"s_lshl_b32 s{sT0}, s{sMT}, 1")
        A(f"s_add_u32 s{sT0}, s{sT0}, s{sWM}")
        A(f"s_mul_i32 s{sT0}, s{sT0}, {32*2560}")
        A(f"s_mul_i32 s{sT1}, s{sBR}, 1280")
        A(f"s_add_u32 s{sT0}, s{sT0}, s{sT1}")
        A(f"s_lshl_b32 s{sT1}, s{sNT}, 8")
        A(f"s_add_u32 s{sT0}, s{sT0}, s{sT1}")
        A(f"s_lshl_b32 s{sT1}, s{sWN}, 7")
        A(f"s_add_u32 s{sT0}, s{sT0}, s{sT1}")
        for fi in range(2):
            for g in range(4):
                a = acc(0, fi) + 4 * g
                e = vE + ((fi * 4 + g) % 4) * 2
                A(f"v_cvt_pk_bf16_f32 v{e}, v{a}, v{a+1}")
                A(f"v_cvt_pk_bf16_f32 v{e+1}, v{a+2}, v{a+3}")
                A(f"buffer_store_dwordx2 {vr(e,2)}, v{vT}, {sr(sOS,4)}, s{sT0} offen offset:{fi*64+g*16}")
    else:
        A(f"s_cmp_ge_u32 s{sNT}, 10")
        A(f"s_cbranch_scc1 {P}_vpath")
        mainloop("a", False)
        A(f"s_cmp_ge_u32 s{sNT}, 5")
        A(f"s_cselect_b32 s{sT0}, 5, 0")
        A(f"s_cselect_b32 s55, {REG_K}, 0")
        A(f"s_cselect_b32 s56, 1.0, {hex(f2u(CSCALE))}")
        A(f"s_sub_u32 s{sT0}, s{sNT}, s{sT0}")
        A(f"s_lshl_b32 s{sT0}, s{sT0}, 7")
        A(f"s_lshl_b32 s{sT1}, s{sWN}, 6")
        A(f"s_add_u32 s{sT0}, s{sT0}, s{sT1}")
        A(f"s_lshl_b32 s{sT1}, s{sMT}, 1")
        A(f"s_add_u32 s{sT1}, s{sT1}, s{sWM}")
        A(f"s_mul_i32 s{sT1}, s{sT1}, {2*TILE_B}")
        A(f"s_add_u32 s55, s55, s{sT1}")
        for r in range(nacc):
            A(f"v_mul_f32 v{vAcc+r}, s56, v{vAcc+r}")
        A(f"v_lshrrev_b32 v{vT}, 5, v0")
        A(f"v_lshl_add_u32 v{vT}, v{vT}, 2, s{sT0}")
        A(f"v_and_b32 v{vT+1}, 31, v0")
        A(f"v_lshlrev_b32 v{vT+1}, 4, v{vT+1}")
        A(f"v_mov_b32 v{vE+8}, 0x3f80")
        A(f"v_mov_b32 v{vE+9}, 0")
        A(f"s_mov_b32 s57, {HEAD_B}")
        for fi in range(2):
            for g in range(4):
                A(f"v_add_u32 v{vT+2}, {fi*32+g*8}, v{vT}")
                A(f"v_mul_u32_u24 v{vT+3}, 3277, v{vT+2}")
                A(f"v_lshrrev_b32 v{vT+3}, 16, v{vT+3}")
                A(f"v_mul_u32_u24 v{vT+4}, 20, v{vT+3}")
                A(f"v_sub_u32 v{vT+2}, v{vT+2}, v{vT+4}")
                A(f"v_mul_lo_u32 v{vT+3}, v{vT+3}, s57")
                A(f"v_add_u32 v{vT+3}, v{vT+3}, v{vT+1}")
                A(f"v_lshrrev_b32 v{vT+4}, 3, v{vT+2}")
                A(f"v_lshl_add_u32 v{vT+3}, v{vT+4}, 9, v{vT+3}")
                A(f"v_and_b32 v{vT+4}, 7, v{vT+2}")
                A(f"v_lshl_add_u32 v{vT+3}, v{vT+4}, 1, v{vT+3}")
                A(f"v_cmp_eq_u32 vcc, 16, v{vT+2}")
                for xi in range(2):
                    a = acc(xi, fi) + 4 * g
                    e = vE + xi * 2
                    A(f"v_cvt_pk_bf16_f32 v{e}, v{a}, v{a+1}")
                    A(f"v_cvt_pk_bf16_f32 v{e+1}, v{a+2}, v{a+3}")
                    A(f"buffer_store_dwordx2 {vr(e,2)}, v{vT+3}, {sr(sOS,4)}, s55 offen offset:{xi*TILE_B}")
                A("s_and_saveexec_b64 s[58:59], vcc")
                for xi in range(2):
                    A(f"buffer_store_dwordx2 {vr(vE+8,2)}, v{vT+3}, {sr(sOS,4)}, s55 offen offset:{xi*TILE_B+8}")
                A("s_mov_b64 exec, s[58:59]")
        A("s_endpgm")
        lab(f"{P}_vpath")
        mainloop("v", True)
        A(f"s_sub_u32 s{sT0}, s{sNT}, 10")
        A(f"s_lshl_b32 s{sT0}, s{sT0}, 7")
        A(f"s_lshl_b32 s{sT1}, s{sWN}, 6")
        A(f"s_add_u32 s{sT0}, s{sT0}, s{sT1}")
        A(f"s_lshl_b32 s{sT1}, s{sMT}, 1")
        A(f"s_add_u32 s{sT1}, s{sT1}, s{sWM}")
        A(f"s_mul_i32 s{sT1}, s{sT1}, {2*TILE_B}")
        A(f"s_add_u32 s55, s{sT1}, {REG_V}")
        A(f"s_mov_b32 s57, {HEAD_B}")
        A(f"v_and_b32 v{vT}, 31, v0")
        A(f"v_add_u32 v{vT}, s{sT0}, v{vT}")
        A(f"v_lshrrev_b32 v{vT+1}, 5, v0")
        A(f"v_mul_u32_u24 v{vT+1}, 384, v{vT+1}")
        for fi in range(2):
            A(f"v_add_u32 v{vT+2}, {fi*32}, v{vT}")
            A(f"v_mul_u32_u24 v{vT+3}, 3277, v{vT+2}")
            A(f"v_lshrrev_b32 v{vT+3}, 16, v{vT+3}")
            A(f"v_mul_u32_u24 v{vT+4}, 20, v{vT+3}")
            A(f"v_sub_u32 v{vT+2}, v{vT+2}, v{vT+4}")
            A(f"v_mul_lo_u32 v{vT+3}, v{vT+3}, s57")
            A(f"v_add_u32 v{vT+3}, v{vT+3}, v{vT+1}")
            A(f"v_lshl_add_u32 v{vT+3}, v{vT+2}, 4, v{vT+3}")
            A(f"v_cmp_eq_u32 vcc, 16, v{vT+2}")
            A(f"v_mov_b32 v{vT+5}, 0x3f803f80")
            A("s_nop 1")
            A(f"v_cndmask_b32 v{vE+16}, 0, v{vT+5}, vcc")
            A(f"v_mov_b32 v{vE+17}, v{vE+16}")
            A(f"v_mov_b32 v{vE+18}, v{vE+16}")
            A(f"v_mov_b32 v{vE+19}, v{vE+16}")
            A(f"v_cmp_le_u32 vcc, 16, v{vT+2}")
            for xi in range(2):
                for m in range(2):
                    a = acc(xi, fi) + 8 * m
                    e = vE + (xi * 2 + m) * 4
                    for j in range(4):
                        A(f"v_cvt_pk_bf16_f32 v{e+j}, v{a+2*j}, v{a+2*j+1}")
                    A(f"buffer_store_dwordx4 {vr(e,4)}, v{vT+3}, {sr(sOS,4)}, s55 offen offset:{xi*TILE_B+m*768}")
            A("s_and_saveexec_b64 s[58:59], vcc")
            for xi in range(2):
                for m in range(2):
                    A(f"buffer_store_dwordx4 {vr(vE+16,4)}, v{vT+3}, {sr(sOS,4)}, s55 offen offset:{xi*TILE_B+m*768+64}")
            A("s_mov_b64 exec, s[58:59]")
    lab(f"{P}_end")
    A("s_endpgm")
    kernel_desc(name, NV, 64)
    return STG * 2

def attn(name):
    NB, NA = 512, 256
    P = "att"
    sHD, sQT, sWV, sT0, sT1, sCNT = 22, 23, 25, 26, 27, 24
    sQS, sKS, sVS, sOS, sDS = 28, 32, 36, 40, 44
    sDO, sM0 = 48, 49
    sMLO, sMV = 50, 52
    sUO = 54
    sMASK = 36 + 0
    vLa, vVa = 1, 2
    vT = 3
    vQ0, vQ1 = 12, 16
    vK = 20
    vV = 36
    vS = 52
    vP = 84
    vO = 92
    vM = 108
    NV = 116
    BUFB = 12288

    kernel_header(name)
    A(f"s_cmp_ge_u32 s2, {NB+NA}")
    A(f"s_cbranch_scc1 {P}_end")
    A("s_load_dwordx2 s[20:21], s[0:1], 64")
    A("v_lshrrev_b32 v1, 6, v0")
    A("v_and_b32 v0, 63, v0")
    A(f"v_readfirstlane_b32 s{sWV}, v1")
    A(f"s_mov_b32 s{sMLO}, -1")
    A(f"s_mov_b32 s{sMLO+1}, 0")
    A(f"s_mov_b32 s{sMV}, 0x00ffffff")
    A(f"s_mov_b32 s{sMV+1}, 0x00ffffff")
    A(f"v_lshlrev_b32 v{vLa}, 4, v0")
    A(f"v_and_b32 v{vT}, 31, v0")
    A(f"v_lshrrev_b32 v{vT+1}, 5, v0")
    A(f"v_mul_u32_u24 v{vVa}, 384, v{vT+1}")
    A(f"v_lshl_add_u32 v{vVa}, v{vT}, 4, v{vVa}")
    A("s_waitcnt lgkmcnt(0)")
    A(f"s_cmp_ge_u32 s2, {NB}")
    A(f"s_cselect_b32 s{sT0}, 0, {1<<BR_SHIFT}")
    A(f"s_add_u32 s20, s20, s{sT0}")
    A("s_addc_u32 s21, s21, 0")
    A("s_and_b32 s21, s21, 0xffff")
    for s, reg, sz in ((sQS, REG_Q, 0x300000), (sKS, REG_K, 0x300000), (sVS, REG_V, 0x300000), (sOS, REG_O, 2621440)):
        A(f"s_add_u32 s{s}, s20, {reg}")
        A(f"s_addc_u32 s{s+1}, s21, 0")
        A(f"s_mov_b32 s{s+2}, {sz}")
        A(f"s_mov_b32 s{s+3}, 0x00020000")
    for r in range(8): A(f"v_mov_b32 v{vQ0+r}, 0")
    for r in range(32): A(f"v_mov_b32 v{vK+r}, 0")
    A(f"s_cmp_ge_u32 s2, {NB}")
    A(f"s_cbranch_scc1 {P}_local")

    A(f"s_and_b32 s{sT0}, s2, 7")
    A(f"s_lshr_b32 s{sT1}, s2, 3")
    A(f"s_lshl_b32 s{sHD}, s{sT0}, 2")
    A(f"s_and_b32 s{sT0}, s{sT1}, 3")
    A(f"s_add_u32 s{sHD}, s{sHD}, s{sT0}")
    A(f"s_lshr_b32 s{sT1}, s{sT1}, 2")
    A(f"s_lshl_b32 s{sQT}, s{sT1}, 2")
    A(f"s_add_u32 s{sQT}, s{sQT}, s{sWV}")
    A(f"s_lshl_b32 s{sT0}, s{sHD}, 6")
    A(f"s_add_u32 s{sT0}, s{sT0}, s{sQT}")
    A(f"s_mul_i32 s{sUO}, s{sT0}, {TILE_B}")
    A(f"buffer_load_dwordx4 {vr(vQ0,4)}, v{vLa}, {sr(sQS,4)}, s{sUO} offen")
    A(f"s_mov_b64 exec, {sr(sMLO,2)}")
    A(f"buffer_load_dwordx2 {vr(vQ1,2)}, v{vLa}, {sr(sQS,4)}, s{sUO} offen offset:1024")
    A("s_mov_b64 exec, -1")
    A(f"s_cmp_ge_u32 s{sWV}, 2")
    for j in range(4):
        A(f"s_cselect_b32 s{sDS+j}, s{sVS+j}, s{sKS+j}")
    A(f"s_and_b32 s{sT0}, s{sWV}, 1")
    A(f"s_mul_i32 s{sT0}, s{sT0}, 3072")
    A(f"s_mul_i32 s{sDO}, s{sHD}, {HEAD_B}")
    A(f"s_add_u32 s{sDO}, s{sDO}, s{sT0}")
    A(f"s_mul_i32 s{sM0}, s{sWV}, 3072")
    def dma(buf):
        for j in range(3):
            A(f"s_add_u32 m0, s{sM0}, {buf*BUFB + j*1024}")
            A("s_nop 0")
            A(f"buffer_load_dwordx4 v{vLa}, {sr(sDS,4)}, s{sDO} offen offset:{j*1024} lds")
        A(f"s_add_u32 s{sDO}, s{sDO}, 6144")
    def dma(buf):
        for j in range(3):
            A(f"s_add_u32 m0, s{sM0}, {buf*BUFB}")
            A("s_nop 0")
            A(f"buffer_load_dwordx4 v{vLa}, {sr(sDS,4)}, s{sDO} offen offset:{j*1024} lds")
        A(f"s_add_u32 s{sDO}, s{sDO}, 6144")
    dma(0); dma(1); dma(2)
    for r in range(16): A(f"v_mov_b32 v{vO+r}, 0")
    A(f"v_add_u32 v{vVa}, 6144, v{vVa}")
    A("s_waitcnt vmcnt(6)")
    A("s_barrier")

    def kread(buf, i, st):
        A(f"ds_read_b128 {vr(vK+st*8,4)}, v{vLa} offset:{buf*BUFB + i*TILE_B}")
        A(f"s_mov_b64 exec, {sr(sMLO,2)}")
        A(f"ds_read_b128 {vr(vK+st*8+4,4)}, v{vLa} offset:{buf*BUFB + i*TILE_B + 1024}")
    def vread(buf, i, st):
        A(f"s_mov_b64 exec, {sr(sMV,2)}")
        A(f"ds_read_b128 {vr(vV+st*8,4)}, v{vVa} offset:{buf*BUFB + i*TILE_B}")
        A(f"ds_read_b128 {vr(vV+st*8+4,4)}, v{vVa} offset:{buf*BUFB + i*TILE_B + 768}")
        A("s_mov_b64 exec, -1")
    def qk(st, sd):
        A(f"v_mfma_f32_32x32x16_bf16 {vr(vS+sd*16,16)}, {vr(vK+st*8,4)}, {vr(vQ0,4)}, 0")
        A(f"v_mfma_f32_32x32x16_bf16 {vr(vS+sd*16,16)}, {vr(vK+st*8+4,4)}, {vr(vQ1,4)}, {vr(vS+sd*16,16)}")
    def rowmax(src, n, dst, t):
        A(f"v_max3_f32 v{dst}, v{src}, v{src+1}, v{src+2}")
        k = 3
        while k + 1 < n:
            A(f"v_max3_f32 v{dst}, v{dst}, v{src+k}, v{src+k+1}")
            k += 2
        if k < n:
            A(f"v_max_f32 v{dst}, v{dst}, v{src+k}")
        A(f"v_mov_b32 v{t}, v{dst}")
        A("s_nop 1")
        A(f"v_permlane32_swap_b32 v{dst}, v{t}")
        A(f"v_max_f32 v{dst}, v{dst}, v{t}")

    kread(0, 0, 0)
    A("s_mov_b64 exec, -1")
    A("s_waitcnt lgkmcnt(0)")
    qk(0, 0)
    A("s_nop 15")
    rowmax(vS, 16, vM, vT)
    A(f"v_sub_f32 v{vM}, 0, v{vM}")
    A(f"s_mov_b64 exec, {sr(sMLO,2)}")
    A(f"v_cvt_pk_bf16_f32 v{vQ1+2}, v{vM}, 0")
    A("s_mov_b64 exec, -1")
    kread(0, 1, 1)
    A("s_mov_b64 exec, -1")
    A("s_nop 1")
    qk(0, 0)
    A(f"s_mov_b32 s{sCNT}, 0")
    lab(f"{P}_loop")
    for sb in range(4):
        for i in range(4):
            t = sb * 4 + i
            st = t & 1
            if i == 2:
                A("s_waitcnt vmcnt(3)")
                A("s_barrier")
                dma((sb + 3) & 3)
            kb, ki = (sb + (i + 2) // 4) & 3, (i + 2) % 4
            kread(kb, ki, st)
            vread(sb, i, st)
            A("s_waitcnt lgkmcnt(4)")
            S = vS + st * 16
            Sn = vS + (st ^ 1) * 16
            A(f"v_mfma_f32_32x32x16_bf16 {vr(Sn,16)}, {vr(vK+(st^1)*8,4)}, {vr(vQ0,4)}, 0")
            for r in range(0, 8): A(f"v_exp_f32 v{S+r}, v{S+r}")
            A(f"v_mfma_f32_32x32x16_bf16 {vr(Sn,16)}, {vr(vK+(st^1)*8+4,4)}, {vr(vQ1,4)}, {vr(Sn,16)}")
            for j in range(4): A(f"v_cvt_pk_bf16_f32 v{vP+j}, v{S+2*j}, v{S+2*j+1}")
            for r in range(8, 16): A(f"v_exp_f32 v{S+r}, v{S+r}")
            A("s_waitcnt lgkmcnt(0)")
            A(f"v_mfma_f32_32x32x16_bf16 {vr(vO,16)}, {vr(vV+st*8,4)}, {vr(vP,4)}, {vr(vO,16)}")
            for j in range(4, 8): A(f"v_cvt_pk_bf16_f32 v{vP+j}, v{S+2*j}, v{S+2*j+1}")
            A("s_nop 1")
            A(f"v_mfma_f32_32x32x16_bf16 {vr(vO,16)}, {vr(vV+st*8+4,4)}, {vr(vP+4,4)}, {vr(vO,16)}")
    A(f"s_add_u32 s{sCNT}, s{sCNT}, 1")
    A(f"s_cmp_lt_u32 s{sCNT}, 4")
    A(f"s_cbranch_scc1 {P}_loop")
    A("s_nop 15")
    A(f"v_or_b32 v{vT}, 32, v0")
    A(f"v_lshlrev_b32 v{vT}, 2, v{vT}")
    A(f"ds_bpermute_b32 v{vM+1}, v{vT}, v{vO+8}")
    A(f"v_max3_f32 v{vT+1}, abs(v{vO}), abs(v{vO+1}), abs(v{vO+2})")
    for k in range(3, 11, 2):
        A(f"v_max3_f32 v{vT+1}, v{vT+1}, abs(v{vO+k}), abs(v{vO+k+1})")
    A(f"v_max_f32 v{vT+1}, v{vT+1}, abs(v{vO+11})")
    A(f"s_mov_b32 s{sT0}, 0x7b800000")
    A(f"s_mov_b32 s{sT1}, 0x71800000")
    A("s_waitcnt lgkmcnt(0)")
    A(f"v_cmp_nlt_f32 vcc, v{vT+1}, s{sT0}") if False else A(f"v_cmp_ngt_f32 vcc, s{sT0}, v{vT+1}")
    A(f"v_cmp_ngt_f32 {sr(56,2)}, s{sT1}, v{vM+1}")
    A(f"s_or_b64 vcc, vcc, {sr(56,2)}")
    A(f"s_cbranch_vccnz {P}_fallback")
    lab(f"{P}_store")
    def store_o():
        A(f"v_rcp_f32 v{vM+1}, v{vM+1}")
        A(f"v_and_b32 v{vT}, 31, v0")
        A(f"v_mul_u32_u24 v{vT}, 1280, v{vT}")
        A(f"v_lshrrev_b32 v{vT+1}, 5, v0")
        A(f"v_lshl_add_u32 v{vT}, v{vT+1}, 3, v{vT}")
        A(f"s_mul_i32 s{sT0}, s{sQT}, {32*1280}")
        A(f"s_mul_i32 s{sT1}, s{sHD}, 40")
        A(f"s_add_u32 s{sT0}, s{sT0}, s{sT1}")
        for r in range(12):
            A(f"v_mul_f32 v{vO+r}, v{vO+r}, v{vM+1}")
        for c in range(3):
            A(f"v_cvt_pk_bf16_f32 v{vP+2*c}, v{vO+4*c}, v{vO+4*c+1}")
            A(f"v_cvt_pk_bf16_f32 v{vP+2*c+1}, v{vO+4*c+2}, v{vO+4*c+3}")
        A(f"buffer_store_dwordx2 {vr(vP,2)}, v{vT}, {sr(sOS,4)}, s{sT0} offen")
        A(f"buffer_store_dwordx2 {vr(vP+2,2)}, v{vT}, {sr(sOS,4)}, s{sT0} offen offset:16")
        A(f"s_mov_b64 exec, {sr(sMLO,2)}")
        A(f"buffer_store_dwordx2 {vr(vP+4,2)}, v{vT}, {sr(sOS,4)}, s{sT0} offen offset:32")
        A("s_mov_b64 exec, -1")
    store_o()
    A("s_endpgm")

    lab(f"{P}_fallback")
    A(f"v_subrev_u32 v{vVa}, 6144, v{vVa}")
    A(f"v_mov_b32 v{vQ1+2}, 0")
    A(f"v_mov_b32 v{vM}, 0xff800000")
    for r in range(16): A(f"v_mov_b32 v{vO+r}, 0")
    A(f"s_mul_i32 s{sDO}, s{sHD}, {HEAD_B}")
    A(f"s_mov_b32 s{sCNT}, 0")
    def gload_kv(st, so, koff=0):
        A(f"buffer_load_dwordx4 {vr(vK+st*8,4)}, v{vLa}, {sr(sKS,4)}, s{so} offen")
        A(f"s_mov_b64 exec, {sr(sMLO,2)}")
        A(f"buffer_load_dwordx4 {vr(vK+st*8+4,4)}, v{vLa}, {sr(sKS,4)}, s{so} offen offset:1024")
        A(f"s_mov_b64 exec, {sr(sMV,2)}")
        A(f"buffer_load_dwordx4 {vr(vV+st*8,4)}, v{vVa}, {sr(sVS,4)}, s{so} offen")
        A(f"buffer_load_dwordx4 {vr(vV+st*8+4,4)}, v{vVa}, {sr(sVS,4)}, s{so} offen offset:768")
        A("s_mov_b64 exec, -1")
    lab(f"{P}_fbloop")
    gload_kv(0, sDO)
    A("s_waitcnt vmcnt(0)")
    qk(0, 0)
    A("s_nop 15")
    rowmax(vS, 16, vM+2, vT)
    A(f"v_max_f32 v{vM+2}, v{vM+2}, v{vM}")
    A(f"v_sub_f32 v{vM+3}, v{vM}, v{vM+2}")
    A(f"v_exp_f32 v{vM+3}, v{vM+3}")
    A(f"v_mov_b32 v{vM}, v{vM+2}")
    for r in range(16): A(f"v_mul_f32 v{vO+r}, v{vO+r}, v{vM+3}")
    for r in range(16):
        A(f"v_sub_f32 v{vS+r}, v{vS+r}, v{vM}")
        A(f"v_exp_f32 v{vS+r}, v{vS+r}")
    A("s_nop 0")
    for j in range(8): A(f"v_cvt_pk_bf16_f32 v{vP+j}, v{vS+2*j}, v{vS+2*j+1}")
    A("s_nop 1")
    A(f"v_mfma_f32_32x32x16_bf16 {vr(vO,16)}, {vr(vV,4)}, {vr(vP,4)}, {vr(vO,16)}")
    A(f"v_mfma_f32_32x32x16_bf16 {vr(vO,16)}, {vr(vV+4,4)}, {vr(vP+4,4)}, {vr(vO,16)}")
    A(f"s_add_u32 s{sDO}, s{sDO}, {TILE_B}")
    A(f"s_add_u32 s{sCNT}, s{sCNT}, 1")
    A(f"s_cmp_lt_u32 s{sCNT}, 64")
    A("s_nop 15")
    A(f"s_cbranch_scc1 {P}_fbloop")
    A(f"v_or_b32 v{vT}, 32, v0")
    A(f"v_lshlrev_b32 v{vT}, 2, v{vT}")
    A(f"ds_bpermute_b32 v{vM+1}, v{vT}, v{vO+8}")
    A("s_waitcnt lgkmcnt(0)")
    A(f"s_branch {P}_store")

    lab(f"{P}_local")
    sMK = 56
    A(f"v_and_b32 v{vT}, 31, v0")
    A(f"v_lshrrev_b32 v{vT+1}, 5, v0")
    A(f"v_lshlrev_b32 v{vT+1}, 2, v{vT+1}")
    A(f"v_sub_u32 v{vT}, v{vT}, v{vT+1}")
    A(f"v_mov_b32 v{vM+4}, 0")
    for T in range(2):
        for r in range(16):
            cst = 32 - 32 * T - (8 * (r // 4) + r % 4)
            A(f"v_add_u32 v{vT+1}, {cst if cst>=0 else hex(cst & 0xffffffff)}, v{vT}")
            A(f"v_and_b32 v{vT+1}, 0xfffffff1, v{vT+1}")
            A(f"v_cmp_eq_u32 vcc, 0, v{vT+1}")
            A(f"v_mov_b32 v{vT+2}, {hex(1 << (T*16+r))}")
            A("s_nop 1")
            A(f"v_cndmask_b32 v{vT+2}, 0, v{vT+2}, vcc")
            A(f"v_or_b32 v{vM+4}, v{vM+4}, v{vT+2}")
    A(f"v_mov_b32 v{vM+5}, 0xff800000")
    A(f"s_sub_u32 s{sT0}, s2, {NB}")
    A(f"s_lshl_b32 s{sT0}, s{sT0}, 3")
    A(f"s_lshl_b32 s{sT1}, s{sWV}, 1")
    A(f"s_add_u32 s56, s{sT0}, s{sT1}")
    A(f"s_mov_b32 s{sCNT}, 0")
    lab(f"{P}_aloop")
    A(f"s_lshr_b32 s{sHD}, s56, 6")
    A(f"s_and_b32 s{sQT}, s56, 63")
    A(f"s_mul_i32 s{sUO}, s56, {TILE_B}")
    A(f"s_sub_u32 s57, s{sUO}, {TILE_B}")
    A(f"s_cmp_eq_u32 s{sQT}, 0")
    A(f"s_cselect_b32 s57, s{sUO}, s57")
    A(f"s_cselect_b32 s58, 0xffff0000, -1")
    A(f"buffer_load_dwordx4 {vr(vQ0,4)}, v{vLa}, {sr(sQS,4)}, s{sUO} offen")
    A(f"s_mov_b64 exec, {sr(sMLO,2)}")
    A(f"buffer_load_dwordx2 {vr(vQ1,2)}, v{vLa}, {sr(sQS,4)}, s{sUO} offen offset:1024")
    A("s_mov_b64 exec, -1")
    gload_kv(0, 57)
    gload_kv(1, sUO)
    A(f"v_and_b32 v{vM+6}, s58, v{vM+4}")
    A("s_waitcnt vmcnt(0)")
    qk(0, 0)
    qk(1, 1)
    A("s_nop 15")
    for T in range(2):
        for r in range(16):
            A(f"v_and_b32 v{vT}, {hex(1 << (T*16+r))}, v{vM+6}")
            A(f"v_cmp_ne_u32 vcc, 0, v{vT}")
            A("s_nop 1")
            A(f"v_cndmask_b32 v{vS+T*16+r}, v{vM+5}, v{vS+T*16+r}, vcc")
    rowmax(vS, 32, vM, vT)
    for r in range(32):
        A(f"v_sub_f32 v{vS+r}, v{vS+r}, v{vM}")
        A(f"v_exp_f32 v{vS+r}, v{vS+r}")
    A("s_nop 0")
    for T in range(2):
        for j in range(8): A(f"v_cvt_pk_bf16_f32 v{vP+j}, v{vS+T*16+2*j}, v{vS+T*16+2*j+1}")
        A("s_nop 1")
        c = "0" if T == 0 else vr(vO, 16)
        A(f"v_mfma_f32_32x32x16_bf16 {vr(vO,16)}, {vr(vV+T*8,4)}, {vr(vP,4)}, {c}")
        A(f"v_mfma_f32_32x32x16_bf16 {vr(vO,16)}, {vr(vV+T*8+4,4)}, {vr(vP+4,4)}, {vr(vO,16)}")
    A("s_nop 15")
    A(f"v_or_b32 v{vT}, 32, v0")
    A(f"v_lshlrev_b32 v{vT}, 2, v{vT}")
    A(f"ds_bpermute_b32 v{vM+1}, v{vT}, v{vO+8}")
    A("s_waitcnt lgkmcnt(0)")
    store_o()
    A("s_add_u32 s56, s56, 1")
    A(f"s_add_u32 s{sCNT}, s{sCNT}, 1")
    A(f"s_cmp_lt_u32 s{sCNT}, 2")
    A(f"s_cbranch_scc1 {P}_aloop")
    lab(f"{P}_end")
    A("s_endpgm")
    kernel_desc(name, NV, 64)
    return 4 * BUFB

def main():
    k1, k2, k3 = "qkv_kernel", "att_kernel", "out_kernel"
    l1 = gemm("qkv", k1)
    l2 = attn(k2)
    l3 = gemm("out", k3)
    hdr = open(f"cdna_kernels/{NAME}.s.ref").read().split("; Override launch")[0]
    out = hdr
    out += f"; @launch kernel={k1} grid=(480,1,1) block=(256,1,1) lds={l1}\n"
    out += f"; @launch kernel={k2} grid=(768,1,1) block=(256,1,1) lds={l2}\n"
    out += f"; @launch kernel={k3} grid=(320,1,1) block=(256,1,1) lds={l3}\n"
    out += '.amdgcn_target "amdgcn-amd-amdhsa--gfx950"\n.text\n'
    out += "\n".join(L) + "\n"
    out += '.section .rodata,"a"\n.p2align 6\n' + "\n".join(DESC) + "\n"
    dst = sys.argv[1] if len(sys.argv) > 1 else f"cdna_kernels/{NAME}.s"
    open(dst, "w").write(out)
main()
```

```python
import math, sys, os
EXP=os.environ.get('EXP','')

NAME = "concat_heads__sliding_local_dilated__mha_block__prompt"
L = []
def A(s): L.append("    " + s)
def lab(s): L.append(s + ":")
def C(s): L.append("    ; " + s)

TILE_B = 1536
HEAD_B = 64 * TILE_B
REG_Q, REG_K, REG_V, REG_O = 0, 0x300000, 0x600000, 0x900000
BR_SHIFT = 24
CSCALE = (20 ** -0.5) * math.log2(math.e)
import struct
def f2u(x): return struct.unpack("<I", struct.pack("<f", x))[0]

def vr(b, n): return f"v[{b}:{b+n-1}]"
def sr(b, n): return f"s[{b}:{b+n-1}]"

def kernel_header(name):
    L.append(".p2align 8")
    L.append(f".globl {name}")
    L.append(f".type {name},@function")
    lab(name)

DESC = []
def kernel_desc(name, nv, ns):
    nv4 = (nv + 3) // 4 * 4
    DESC.append(f""".amdhsa_kernel {name}
  .amdhsa_next_free_vgpr {nv}
  .amdhsa_next_free_sgpr {ns}
  .amdhsa_accum_offset {nv4}
  .amdhsa_group_segment_fixed_size 0
  .amdhsa_kernarg_size 72
  .amdhsa_user_sgpr_count 2
  .amdhsa_user_sgpr_kernarg_segment_ptr 1
  .amdhsa_system_sgpr_workgroup_id_x 1
.end_amdhsa_kernel""")

def gemm(kind, name):
    if kind == "qkv":
        BM, BN, WGM, WGN, NBUF = 256, 128, 4, 2, 3
        wstride, nwg = 3840, 240
    else:
        BM, BN, WGM, WGN, NBUF = 64, 160, 1, 5, 5
        wstride, nwg = 1280, 256
    NW = WGM * WGN
    NXF = BM // WGM // 32
    NFF = BN // WGN // 32
    XB = BM * 128
    WB = (BN // 32) * 4096
    STG = XB + WB
    nxi_tot, nwi_tot = BM // 8, (BN // 32) * 4
    NX = -(-nxi_tot // NW)
    if NX % 2: NX += 1
    NWI = -(-nwi_tot // NW)
    ND = NX + NWI
    D = NBUF - 1
    NST = 10
    P = name[:3]
    sBR, sMT, sNT, sWV = 22, 23, 24, 25
    sXS, sWS, sOS = 28, 32, 36
    sX = 40
    sW = sX + NX
    sLX = sW + NWI
    sLW = sLX + NX
    sT0 = sLW + NWI
    sT1, sWM, sWN = sT0 + 1, sT0 + 2, sT0 + 3
    sE = sT0 + 4
    NS = sE + 8
    vXE, vXO, vWs = 1, 2, 3
    vT = 4
    vXrd = 10
    vWrd = vXrd + NBUF * 4
    vXf = (vWrd + NBUF * NFF + 3) // 4 * 4
    vWf = vXf + 2 * NXF * 4
    vAcc = vWf + 2 * NFF * 4
    nacc = NXF * NFF * 16
    vE = vAcc + nacc
    NV = vE + 24

    STAMP = ('gst_'+kind) in EXP
    nst_ = [0]
    def stamp():
        if STAMP:
            A(f"s_memtime s[{80+2*nst_[0]}:{81+2*nst_[0]}]")
            nst_[0] += 1
    def dump():
        if STAMP:
            stamp()
            A("s_waitcnt lgkmcnt(0)")
            A("s_mov_b32 s76, s20")
            A("s_and_b32 s77, s21, 0xffff")
            A("s_mov_b32 s78, 0x10000000")
            A("s_mov_b32 s79, 0x00020000")
            for j in range(16):
                A(f"v_mov_b32 v{20+j}, s{80+j}")
            A(f"s_lshl_b32 s74, s2, 3")
            A(f"s_add_u32 s74, s74, s{sWV}")
            A("s_lshl_b32 s74, s74, 6")
            A("s_add_u32 s74, s74, 0x3000000")
            A("v_mov_b32 v40, 0")
            A("s_mov_b64 exec, 1")
            for j in range(4):
                A(f"buffer_store_dwordx4 v[{20+4*j}:{23+4*j}], v40, s[76:79], s74 offen offset:{16*j}")
            nst_[0] -= 1
    kernel_header(name)
    A(f"s_cmp_ge_u32 s2, {nwg}")
    A(f"s_cbranch_scc1 {P}_end")
    stamp()
    A("s_load_dwordx16 s[4:19], s[0:1], 0")
    A("s_load_dwordx2 s[20:21], s[0:1], 64")
    A("s_and_b32 s26, s2, 7")
    A("s_lshr_b32 s27, s2, 3")
    A(f"s_lshr_b32 s{sBR}, s26, 2")
    A("s_and_b32 s26, s26, 3")
    if kind == "qkv":
        A("s_lshl_b32 s26, s26, 1")
        A(f"s_and_b32 s{sMT}, s27, 1")
        A(f"s_add_u32 s{sMT}, s{sMT}, s26")
        A(f"s_lshr_b32 s{sNT}, s27, 1")
    else:
        A("s_lshl_b32 s26, s26, 3")
        A(f"s_and_b32 s{sMT}, s27, 7")
        A(f"s_add_u32 s{sMT}, s{sMT}, s26")
        A(f"s_lshr_b32 s{sNT}, s27, 3")
    A("v_lshrrev_b32 v1, 6, v0")
    A("v_and_b32 v0, 63, v0")
    A(f"v_readfirstlane_b32 s{sWV}, v1")
    A("s_waitcnt lgkmcnt(0)")
    if WGN == 2:
        A(f"s_lshr_b32 s{sWM}, s{sWV}, 1")
        A(f"s_and_b32 s{sWN}, s{sWV}, 1")
    else:
        A(f"s_mov_b32 s{sWM}, 0")
        A(f"s_mov_b32 s{sWN}, s{sWV}")
    A(f"s_lshl_b32 s{sT0}, s{sBR}, {BR_SHIFT}")
    A(f"s_cmp_eq_u32 s{sBR}, 0")
    if kind == "qkv":
        A(f"s_cselect_b32 s{sXS}, s4, s10")
        A(f"s_cselect_b32 s{sXS+1}, s5, s11")
        A(f"s_cselect_b32 s{sWS}, s6, s12")
        A(f"s_cselect_b32 s{sWS+1}, s7, s13")
        A(f"s_add_u32 s{sOS}, s20, s{sT0}")
        A(f"s_addc_u32 s{sOS+1}, s21, 0")
        A(f"s_mov_b32 s{sXS+2}, 2621440")
        A(f"s_mov_b32 s{sWS+2}, 2457600")
        A(f"s_mov_b32 s{sOS+2}, 0x900000")
    else:
        A(f"s_cselect_b32 s{sWS}, s8, s14")
        A(f"s_cselect_b32 s{sWS+1}, s9, s15")
        A(f"s_add_u32 s{sT0}, s{sT0}, {REG_O}")
        A(f"s_add_u32 s{sXS}, s20, s{sT0}")
        A(f"s_addc_u32 s{sXS+1}, s21, 0")
        A(f"s_mov_b32 s{sOS}, s16")
        A(f"s_mov_b32 s{sOS+1}, s17")
        A(f"s_mov_b32 s{sXS+2}, 2621440")
        A(f"s_mov_b32 s{sWS+2}, 819200")
        A(f"s_mov_b32 s{sOS+2}, 5242880")
    for s in (sXS, sWS, sOS):
        A(f"s_and_b32 s{s+1}, s{s+1}, 0xffff")
        A(f"s_mov_b32 s{s+3}, 0x00020000")
    A(f"v_lshrrev_b32 v{vT}, 3, v0")
    A(f"v_mul_u32_u24 v{vXE}, 1280, v{vT}")
    A(f"v_and_b32 v{vT}, 7, v0")
    A(f"v_lshrrev_b32 v{vT+1}, 4, v0")
    A(f"v_xor_b32 v{vT}, v{vT}, v{vT+1}")
    A(f"v_lshl_add_u32 v{vXE}, v{vT}, 4, v{vXE}")
    A(f"v_xor_b32 v{vXO}, 64, v{vXE}")
    A(f"v_lshrrev_b32 v{vT}, 2, v0")
    A(f"v_mul_u32_u24 v{vWs}, {wstride}, v{vT}")
    A(f"v_and_b32 v{vT}, 3, v0")
    A(f"v_lshl_add_u32 v{vWs}, v{vT}, 4, v{vWs}")
    for j in range(NX):
        A(f"s_mul_i32 s{sT0}, s{sWV}, {NX}")
        A(f"s_add_u32 s{sT0}, s{sT0}, {j}")
        if NX * NW != nxi_tot:
            assert nxi_tot & (nxi_tot - 1) == 0
            A(f"s_and_b32 s{sT0}, s{sT0}, {nxi_tot-1}")
        A(f"s_lshl_b32 s{sLX+j}, s{sT0}, 10")
        A(f"s_mul_i32 s{sT1}, s{sMT}, {BM//8}")
        A(f"s_add_u32 s{sT0}, s{sT0}, s{sT1}")
        A(f"s_mul_i32 s{sX+j}, s{sT0}, {8*1280}")
    assert NWI * NW == nwi_tot
    for j in range(NWI):
        A(f"s_mul_i32 s{sT0}, s{sWV}, {NWI}")
        A(f"s_add_u32 s{sT0}, s{sT0}, {j}")
        A(f"s_lshl_b32 s{sLW+j}, s{sT0}, 10")
        A(f"s_add_u32 s{sLW+j}, s{sLW+j}, {XB}")
        A(f"s_and_b32 s{sT1}, s{sT0}, 3")
        A(f"s_mul_i32 s{sT1}, s{sT1}, {16*wstride}")
        A(f"s_lshr_b32 s{sT0}, s{sT0}, 2")
        A(f"s_lshl_b32 s{sT0}, s{sT0}, 6")
        A(f"s_add_u32 s{sT1}, s{sT1}, s{sT0}")
        A(f"s_mul_i32 s{sT0}, s{sNT}, {BN*2}")
        A(f"s_add_u32 s{sW+j}, s{sT1}, s{sT0}")

    def issue(stage):
        buf = stage % NBUF
        for j in range(NX):
            A(f"s_add_u32 m0, s{sLX+j}, {buf*STG}")
            A("s_nop 0")
            A(f"buffer_load_dwordx4 v{vXE if j%2==0 else vXO}, {sr(sXS,4)}, s{sX+j} offen lds")
            A(f"s_add_u32 s{sX+j}, s{sX+j}, 128")
        for j in range(NWI):
            A(f"s_add_u32 m0, s{sLW+j}, {buf*STG}")
            A("s_nop 0")
            A(f"buffer_load_dwordx4 v{vWs}, {sr(sWS,4)}, s{sW+j} offen lds")
            A(f"s_add_u32 s{sW+j}, s{sW+j}, {64*wstride}")

    for st in range(D): issue(st)
    A(f"v_and_b32 v{vT}, 31, v0")
    A(f"s_mul_i32 s{sT0}, s{sWM}, {BM//WGM}")
    A(f"v_add_u32 v{vT}, s{sT0}, v{vT}")
    A(f"v_lshlrev_b32 v{vT}, 7, v{vT}")
    A(f"v_bfe_u32 v{vT+1}, v0, 1, 3")
    A(f"v_lshrrev_b32 v{vT+2}, 5, v0")
    for ks in range(4):
        A(f"v_add_u32 v{vT+3}, {2*ks}, v{vT+2}")
        A(f"v_xor_b32 v{vT+3}, v{vT+3}, v{vT+1}")
        A(f"v_lshl_add_u32 v{vXrd+ks}, v{vT+3}, 4, v{vT}")
        for b in range(1, NBUF):
            A(f"v_add_u32 v{vXrd+b*4+ks}, {b*STG}, v{vXrd+ks}")
    A(f"v_bfe_u32 v{vT}, v0, 2, 2")
    A(f"v_lshl_add_u32 v{vT+1}, v{vT+2}, 3, v{vT}")
    A(f"v_lshlrev_b32 v{vT+1}, 6, v{vT+1}")
    A(f"v_bfe_u32 v{vT+3}, v0, 4, 1")
    A(f"v_lshl_add_u32 v{vT+1}, v{vT+3}, 5, v{vT+1}")
    A(f"v_and_b32 v{vT+3}, 3, v0")
    A(f"v_lshl_add_u32 v{vT+1}, v{vT+3}, 3, v{vT+1}")
    A(f"s_mul_i32 s{sT0}, s{sWN}, {NFF*4096}")
    A(f"s_add_u32 s{sT0}, s{sT0}, {XB}")
    for b in range(NBUF):
        for fi in range(NFF):
            A(f"s_add_u32 s{sT1}, s{sT0}, {b*STG + fi*4096}")
            A(f"v_add_u32 v{vWrd+b*NFF+fi}, s{sT1}, v{vT+1}")
    for r in range(nacc):
        A(f"v_mov_b32 v{vAcc+r}, 0")

    def acc(xi, fi): return vAcc + (xi * NFF + fi) * 16
    def reads(buf, ks, st):
        for xi in range(NXF):
            A(f"ds_read_b128 {vr(vXf+(st*NXF+xi)*4,4)}, v{vXrd+buf*4+ks} offset:{xi*4096}")
        for fi in range(NFF):
            for i in range(2):
                A(f"ds_read_b64_tr_b16 {vr(vWf+(st*NFF+fi)*4+2*i,2)}, v{vWrd+buf*NFF+fi} offset:{ks*1024 + i*256}")
    nrd = NXF + 2 * NFF
    def compute(buf, vorient):
        reads(buf, 0, 0)
        for ks in range(4):
            st = ks & 1
            if ks < 3:
                reads(buf, ks + 1, st ^ 1)
                A(f"s_waitcnt lgkmcnt({nrd})")
            else:
                A("s_waitcnt lgkmcnt(0)")
            for xi in range(NXF):
                for fi in range(NFF):
                    x = vr(vXf + (st * NXF + xi) * 4, 4)
                    w = vr(vWf + (st * NFF + fi) * 4, 4)
                    a = vr(acc(xi, fi), 16)
                    if vorient:
                        A(f"v_mfma_f32_32x32x16_bf16 {a}, {x}, {w}, {a}")
                    else:
                        A(f"v_mfma_f32_32x32x16_bf16 {a}, {w}, {x}, {a}")

    def mainloop(vorient):
        for s in range(NST):
            A(f"s_waitcnt vmcnt({ND*min(D-1, NST-1-s)})")
            A("s_barrier")
            if s in (0, 1, 5):
                if vorient and s == 0: nst_[0] = 1
                stamp()
            if s + D < NST:
                issue(s + D)
            compute(s % NBUF, vorient)
        stamp()
        A("s_nop 15")

    if kind == "out":
        mainloop(False)
        A(f"v_and_b32 v{vT}, 31, v0")
        A(f"v_mul_u32_u24 v{vT}, 2560, v{vT}")
        A(f"v_lshrrev_b32 v{vT+1}, 5, v0")
        A(f"v_lshl_add_u32 v{vT}, v{vT+1}, 3, v{vT}")
        A(f"s_mul_i32 s{sT0}, s{sMT}, {64*2560}")
        A(f"s_mul_i32 s{sT1}, s{sBR}, 1280")
        A(f"s_add_u32 s{sT0}, s{sT0}, s{sT1}")
        A(f"s_mul_i32 s{sT1}, s{sNT}, {BN*2}")
        A(f"s_add_u32 s{sT0}, s{sT0}, s{sT1}")
        A(f"s_lshl_b32 s{sT1}, s{sWN}, 6")
        A(f"s_add_u32 s{sT0}, s{sT0}, s{sT1}")
        A(f"s_add_u32 s{sT1}, s{sT0}, {32*2560}")
        for xi in range(2):
            for g in range(4):
                a = acc(xi, 0) + 4 * g
                e = vE + ((xi * 4 + g) % 4) * 2
                A(f"v_cvt_pk_bf16_f32 v{e}, v{a}, v{a+1}")
                A(f"v_cvt_pk_bf16_f32 v{e+1}, v{a+2}, v{a+3}")
                A(f"buffer_store_dwordx2 {vr(e,2)}, v{vT}, {sr(sOS,4)}, s{sT0+xi} offen offset:{g*16}")
    else:
        A(f"s_cmp_ge_u32 s{sNT}, 10")
        A(f"s_cbranch_scc1 {P}_vpath")
        mainloop(False)
        A(f"s_cmp_ge_u32 s{sNT}, 5")
        A(f"s_cselect_b32 s{sT0}, 5, 0")
        A(f"s_cselect_b32 s{sE}, {REG_K}, 0")
        A(f"s_cselect_b32 s{sE+1}, 1.0, {hex(f2u(CSCALE))}")
        A(f"s_sub_u32 s{sT0}, s{sNT}, s{sT0}")
        A(f"s_lshl_b32 s{sT0}, s{sT0}, 7")
        A(f"s_lshl_b32 s{sT1}, s{sWN}, 6")
        A(f"s_add_u32 s{sT0}, s{sT0}, s{sT1}")
        A(f"s_mul_i32 s{sT1}, s{sMT}, {WGM}")
        A(f"s_add_u32 s{sT1}, s{sT1}, s{sWM}")
        A(f"s_mul_i32 s{sT1}, s{sT1}, {2*TILE_B}")
        A(f"s_add_u32 s{sE}, s{sE}, s{sT1}")
        for r in range(nacc):
            A(f"v_mul_f32 v{vAcc+r}, s{sE+1}, v{vAcc+r}")
        A(f"v_lshrrev_b32 v{vT}, 5, v0")
        A(f"v_lshl_add_u32 v{vT}, v{vT}, 2, s{sT0}")
        A(f"v_and_b32 v{vT+1}, 31, v0")
        A(f"v_lshlrev_b32 v{vT+1}, 4, v{vT+1}")
        A(f"v_mov_b32 v{vE+8}, 0x3f80")
        A(f"v_mov_b32 v{vE+9}, 0")
        A(f"s_mov_b32 s{sE+2}, {HEAD_B}")
        for fi in range(2):
            for g in range(4):
                A(f"v_add_u32 v{vT+2}, {fi*32+g*8}, v{vT}")
                A(f"v_mul_u32_u24 v{vT+3}, 3277, v{vT+2}")
                A(f"v_lshrrev_b32 v{vT+3}, 16, v{vT+3}")
                A(f"v_mul_u32_u24 v{vT+4}, 20, v{vT+3}")
                A(f"v_sub_u32 v{vT+2}, v{vT+2}, v{vT+4}")
                A(f"v_mul_lo_u32 v{vT+3}, v{vT+3}, s{sE+2}")
                A(f"v_add_u32 v{vT+3}, v{vT+3}, v{vT+1}")
                A(f"v_lshrrev_b32 v{vT+4}, 3, v{vT+2}")
                A(f"v_lshl_add_u32 v{vT+3}, v{vT+4}, 9, v{vT+3}")
                A(f"v_and_b32 v{vT+4}, 7, v{vT+2}")
                A(f"v_lshl_add_u32 v{vT+3}, v{vT+4}, 1, v{vT+3}")
                A(f"v_cmp_eq_u32 vcc, 16, v{vT+2}")
                for xi in range(2):
                    a = acc(xi, fi) + 4 * g
                    e = vE + xi * 2
                    A(f"v_cvt_pk_bf16_f32 v{e}, v{a}, v{a+1}")
                    A(f"v_cvt_pk_bf16_f32 v{e+1}, v{a+2}, v{a+3}")
                    A(f"buffer_store_dwordx2 {vr(e,2)}, v{vT+3}, {sr(sOS,4)}, s{sE} offen offset:{xi*TILE_B}")
                A(f"s_and_saveexec_b64 {sr(sE+4,2)}, vcc")
                for xi in range(2):
                    A(f"buffer_store_dwordx2 {vr(vE+8,2)}, v{vT+3}, {sr(sOS,4)}, s{sE} offen offset:{xi*TILE_B+8}")
                A(f"s_mov_b64 exec, {sr(sE+4,2)}")
        dump()
        A("s_endpgm")
        lab(f"{P}_vpath")
        mainloop(True)
        A(f"s_sub_u32 s{sT0}, s{sNT}, 10")
        A(f"s_lshl_b32 s{sT0}, s{sT0}, 7")
        A(f"s_lshl_b32 s{sT1}, s{sWN}, 6")
        A(f"s_add_u32 s{sT0}, s{sT0}, s{sT1}")
        A(f"s_mul_i32 s{sT1}, s{sMT}, {WGM}")
        A(f"s_add_u32 s{sT1}, s{sT1}, s{sWM}")
        A(f"s_mul_i32 s{sT1}, s{sT1}, {2*TILE_B}")
        A(f"s_add_u32 s{sE}, s{sT1}, {REG_V}")
        A(f"s_mov_b32 s{sE+2}, {HEAD_B}")
        A(f"v_and_b32 v{vT}, 31, v0")
        A(f"v_add_u32 v{vT}, s{sT0}, v{vT}")
        A(f"v_lshrrev_b32 v{vT+1}, 5, v0")
        A(f"v_mul_u32_u24 v{vT+1}, 384, v{vT+1}")
        for fi in range(2):
            A(f"v_add_u32 v{vT+2}, {fi*32}, v{vT}")
            A(f"v_mul_u32_u24 v{vT+3}, 3277, v{vT+2}")
            A(f"v_lshrrev_b32 v{vT+3}, 16, v{vT+3}")
            A(f"v_mul_u32_u24 v{vT+4}, 20, v{vT+3}")
            A(f"v_sub_u32 v{vT+2}, v{vT+2}, v{vT+4}")
            A(f"v_mul_lo_u32 v{vT+3}, v{vT+3}, s{sE+2}")
            A(f"v_add_u32 v{vT+3}, v{vT+3}, v{vT+1}")
            A(f"v_lshl_add_u32 v{vT+3}, v{vT+2}, 4, v{vT+3}")
            A(f"v_cmp_eq_u32 vcc, 16, v{vT+2}")
            A(f"v_mov_b32 v{vT+5}, 0x3f803f80")
            A("s_nop 1")
            A(f"v_cndmask_b32 v{vE+16}, 0, v{vT+5}, vcc")
            A(f"v_mov_b32 v{vE+17}, v{vE+16}")
            A(f"v_mov_b32 v{vE+18}, v{vE+16}")
            A(f"v_mov_b32 v{vE+19}, v{vE+16}")
            A(f"v_cmp_le_u32 vcc, 16, v{vT+2}")
            for xi in range(2):
                for m in range(2):
                    a = acc(xi, fi) + 8 * m
                    e = vE + (xi * 2 + m) * 4
                    for j in range(4):
                        A(f"v_cvt_pk_bf16_f32 v{e+j}, v{a+2*j}, v{a+2*j+1}")
                    A(f"buffer_store_dwordx4 {vr(e,4)}, v{vT+3}, {sr(sOS,4)}, s{sE} offen offset:{xi*TILE_B+m*768}")
            A(f"s_and_saveexec_b64 {sr(sE+4,2)}, vcc")
            for xi in range(2):
                for m in range(2):
                    A(f"buffer_store_dwordx4 {vr(vE+16,4)}, v{vT+3}, {sr(sOS,4)}, s{sE} offen offset:{xi*TILE_B+m*768+64}")
            A(f"s_mov_b64 exec, {sr(sE+4,2)}")
    dump()
    lab(f"{P}_end")
    A("s_endpgm")
    assert (sE + 4) % 2 == 0
    kernel_desc(name, NV, 100 if STAMP else NS)
    return STG * NBUF, nwg, NW * 64

def attn(name):
    NWAVE = 8 if 'w4' not in EXP else 4
    TPS = 8 if NWAVE == 8 else 4
    NBUF = 3
    NSTG = 64 // TPS
    NB = 2048 // NWAVE
    HALF = TPS * TILE_B
    BUFB = 2 * HALF
    NCH = BUFB // 1024 // NWAVE
    assert NCH * NWAVE * 1024 == BUFB
    P = "att"
    sHD, sQT, sWV, sT0, sT1, sCNT = 22, 23, 25, 26, 27, 24
    sQS, sKS, sVS, sOS, sDS = 28, 32, 36, 40, 44
    sDO, sM0 = 48, 49
    sMLO, sMV = 50, 52
    sUO, sUP, sBW, sBN = 54, 55, 56, 57
    sAH, sAQ = 58, 59
    vLa, vVa = 1, 2
    vT = 3
    vKc, vKn = 10, 11
    vQ0, vQ1 = 12, 16
    vK = 20
    vV = 36
    vS = 52
    vP = 84
    vO = 92
    vM = 108
    vQB = 116
    vVc = 124
    NV = 125

    kernel_header(name)
    A(f"s_cmp_ge_u32 s2, {NB}")
    A(f"s_cbranch_scc1 {P}_end")
    A("s_load_dwordx2 s[20:21], s[0:1], 64")
    if 'stamp' in EXP:
        A("s_memtime s[60:61]")
        A("s_memrealtime s[62:63]")
        A("s_waitcnt lgkmcnt(0)")
        A("s_mov_b32 s64, s20")
        A("s_and_b32 s65, s21, 0xffff")
        A("s_mov_b32 s66, 0x10000000")
        A("s_mov_b32 s67, 0x00020000")
    A("v_lshrrev_b32 v1, 6, v0")
    A("v_and_b32 v0, 63, v0")
    A(f"v_readfirstlane_b32 s{sWV}, v1")
    A(f"s_mov_b32 s{sMLO}, -1")
    A(f"s_mov_b32 s{sMLO+1}, 0")
    A(f"s_mov_b32 s{sMV}, 0x00ffffff")
    A(f"s_mov_b32 s{sMV+1}, 0x00ffffff")
    A(f"v_lshlrev_b32 v{vLa}, 4, v0")
    A(f"v_and_b32 v{vT}, 31, v0")
    A(f"v_lshrrev_b32 v{vT+1}, 5, v0")
    A(f"v_mul_u32_u24 v{vVa}, 384, v{vT+1}")
    A(f"v_lshl_add_u32 v{vVa}, v{vT}, 4, v{vVa}")
    A("s_waitcnt lgkmcnt(0)")
    A("s_and_b32 s21, s21, 0xffff")
    def srds(br):
        for sg, reg, sz in ((sQS, REG_Q, 0x300000), (sKS, REG_K, 0x300000), (sVS, REG_V, 0x300000), (sOS, REG_O, 2621440)):
            A(f"s_add_u32 s{sg}, s20, {reg + (br << BR_SHIFT)}")
            A(f"s_addc_u32 s{sg+1}, s21, 0")
            A(f"s_mov_b32 s{sg+2}, {sz}")
            A(f"s_mov_b32 s{sg+3}, 0x00020000")
    srds(1)
    for r in range(8): A(f"v_mov_b32 v{vQ0+r}, 0")
    for r in range(8): A(f"v_mov_b32 v{vQB+r}, 0")
    for r in range(32): A(f"v_mov_b32 v{vK+r}, 0")
    QB = 64 // NWAVE
    A(f"s_and_b32 s{sT0}, s2, 7")
    A(f"s_lshr_b32 s{sT1}, s2, 3")
    A(f"s_lshl_b32 s{sHD}, s{sT0}, 2")
    A(f"s_and_b32 s{sT0}, s{sT1}, 3")
    A(f"s_add_u32 s{sHD}, s{sHD}, s{sT0}")
    A(f"s_lshr_b32 s{sT1}, s{sT1}, 2")
    A(f"s_mul_i32 s{sQT}, s{sT1}, {NWAVE}")
    A(f"s_add_u32 s{sQT}, s{sQT}, s{sWV}")
    A(f"s_lshl_b32 s{sT0}, s{sHD}, 6")
    A(f"s_add_u32 s{sT0}, s{sT0}, s{sQT}")
    A(f"s_mul_i32 s{sUO}, s{sT0}, {TILE_B}")
    A(f"buffer_load_dwordx4 {vr(vQB,4)}, v{vLa}, {sr(sQS,4)}, s{sUO} offen")
    A(f"s_mov_b64 exec, {sr(sMLO,2)}")
    A(f"buffer_load_dwordx2 {vr(vQB+4,2)}, v{vLa}, {sr(sQS,4)}, s{sUO} offen offset:1024")
    A("s_mov_b64 exec, -1")
    A(f"s_cmp_ge_u32 s{sWV}, {NWAVE//2}")
    for j in range(4):
        A(f"s_cselect_b32 s{sDS+j}, s{sVS+j}, s{sKS+j}")
    A(f"s_and_b32 s{sT0}, s{sWV}, {NWAVE//2-1}")
    A(f"s_mul_i32 s{sT0}, s{sT0}, {NCH*1024}")
    A(f"s_mul_i32 s{sDO}, s{sHD}, {HEAD_B}")
    A(f"s_add_u32 s{sDO}, s{sDO}, s{sT0}")
    A(f"s_mul_i32 s{sM0}, s{sWV}, {NCH*1024}")
    A(f"s_mov_b32 s{sBW}, 0")
    def dma():
        A(f"s_add_u32 m0, s{sM0}, s{sBW}")
        A(f"s_add_u32 s{sBW}, s{sBW}, {BUFB}")
        for j in range(NCH):
            A(f"buffer_load_dwordx4 v{vLa}, {sr(sDS,4)}, s{sDO} offen offset:{j*1024} lds")
        A(f"s_cmp_ge_u32 s{sBW}, {NBUF*BUFB}")
        A(f"s_cselect_b32 s{sBW}, 0, s{sBW}")
        A(f"s_add_u32 s{sDO}, s{sDO}, {HALF}")
    dma(); dma()

    def qk(st, sd):
        A(f"v_mfma_f32_32x32x16_bf16 {vr(vS+sd*16,16)}, {vr(vK+st*8,4)}, {vr(vQ0,4)}, 0")
        A(f"v_mfma_f32_32x32x16_bf16 {vr(vS+sd*16,16)}, {vr(vK+st*8+4,4)}, {vr(vQ1,4)}, {vr(vS+sd*16,16)}")
    def rowmax(src, n, dst, t):
        A(f"v_max3_f32 v{dst}, v{src}, v{src+1}, v{src+2}")
        k = 3
        while k + 1 < n:
            A(f"v_max3_f32 v{dst}, v{dst}, v{src+k}, v{src+k+1}")
            k += 2
        if k < n:
            A(f"v_max_f32 v{dst}, v{dst}, v{src+k}")
        A(f"v_mov_b32 v{t}, v{dst}")
        A("s_nop 1")
        A(f"v_permlane32_swap_b32 v{dst}, v{t}")
        A(f"v_max_f32 v{dst}, v{dst}, v{t}")
    def gload_kv(st, so):
        A(f"buffer_load_dwordx4 {vr(vK+st*8,4)}, v{vLa}, {sr(sKS,4)}, s{so} offen")
        A(f"s_mov_b64 exec, {sr(sMLO,2)}")
        A(f"buffer_load_dwordx4 {vr(vK+st*8+4,4)}, v{vLa}, {sr(sKS,4)}, s{so} offen offset:1024")
        A(f"s_mov_b64 exec, {sr(sMV,2)}")
        A(f"buffer_load_dwordx4 {vr(vV+st*8,4)}, v{vVa}, {sr(sVS,4)}, s{so} offen")
        A(f"buffer_load_dwordx4 {vr(vV+st*8+4,4)}, v{vVa}, {sr(sVS,4)}, s{so} offen offset:768")
        A("s_mov_b64 exec, -1")
    def get_l():
        A(f"v_or_b32 v{vT}, 32, v0")
        A(f"v_lshlrev_b32 v{vT}, 2, v{vT}")
        A(f"ds_bpermute_b32 v{vM+1}, v{vT}, v{vO+8}")
    def store_o(shd, sqt):
        A(f"v_rcp_f32 v{vM+1}, v{vM+1}")
        A(f"v_and_b32 v{vT}, 31, v0")
        A(f"v_mul_u32_u24 v{vT}, 1280, v{vT}")
        A(f"v_lshrrev_b32 v{vT+1}, 5, v0")
        A(f"v_lshl_add_u32 v{vT}, v{vT+1}, 3, v{vT}")
        A(f"s_mul_i32 s{sT0}, s{sqt}, {32*1280}")
        A(f"s_mul_i32 s{sT1}, s{shd}, 40")
        A(f"s_add_u32 s{sT0}, s{sT0}, s{sT1}")
        for r in range(12):
            A(f"v_mul_f32 v{vO+r}, v{vO+r}, v{vM+1}")
        for c in range(3):
            A(f"v_cvt_pk_bf16_f32 v{vP+2*c}, v{vO+4*c}, v{vO+4*c+1}")
            A(f"v_cvt_pk_bf16_f32 v{vP+2*c+1}, v{vO+4*c+2}, v{vO+4*c+3}")
        A(f"buffer_store_dwordx2 {vr(vP,2)}, v{vT}, {sr(sOS,4)}, s{sT0} offen")
        A(f"buffer_store_dwordx2 {vr(vP+2,2)}, v{vT}, {sr(sOS,4)}, s{sT0} offen offset:16")
        A(f"s_mov_b64 exec, {sr(sMLO,2)}")
        A(f"buffer_store_dwordx2 {vr(vP+4,2)}, v{vT}, {sr(sOS,4)}, s{sT0} offen offset:32")
        A("s_mov_b64 exec, -1")

    if 'noA' not in EXP:
        srds(0)
        A(f"s_mul_i32 s{sT0}, s2, {NWAVE}")
        A(f"s_add_u32 s{sT0}, s{sT0}, s{sWV}")
        A(f"s_lshr_b32 s{sAH}, s{sT0}, 6")
        A(f"s_and_b32 s{sAQ}, s{sT0}, 63")
        A(f"s_mul_i32 s{sUO}, s{sT0}, {TILE_B}")
        A(f"s_sub_u32 s{sUP}, s{sUO}, {TILE_B}")
        A(f"s_cmp_eq_u32 s{sAQ}, 0")
        A(f"s_cselect_b32 s{sUP}, s{sUO}, s{sUP}")
        A(f"s_cselect_b32 s{sT1}, 0, -1")
        A(f"buffer_load_dwordx4 {vr(vQ0,4)}, v{vLa}, {sr(sQS,4)}, s{sUO} offen")
        A(f"s_mov_b64 exec, {sr(sMLO,2)}")
        A(f"buffer_load_dwordx2 {vr(vQ1,2)}, v{vLa}, {sr(sQS,4)}, s{sUO} offen offset:1024")
        A("s_mov_b64 exec, -1")
        gload_kv(0, sUP)
        gload_kv(1, sUO)
        A(f"v_and_b32 v{vT}, 31, v0")
        A(f"v_lshrrev_b32 v{vT+1}, 5, v0")
        A(f"v_lshlrev_b32 v{vT+1}, 2, v{vT+1}")
        A(f"v_sub_u32 v{vT}, v{vT}, v{vT+1}")
        A(f"v_add_u32 v{vT}, 18, v{vT}")
        A(f"v_mov_b32 v{vM+4}, 0x5555")
        A(f"v_mov_b32 v{vM+5}, 0")
        A(f"v_lshlrev_b64 {vr(vM+4,2)}, v{vT}, {vr(vM+4,2)}")
        A(f"v_and_b32 v{vM+4}, s{sT1}, v{vM+4}")
        A(f"v_mov_b32 v{vM+6}, 0xff800000")
        A("s_waitcnt vmcnt(0)")
        qk(0, 0)
        qk(1, 1)
        A("s_nop 15")
        for T in range(2):
            for r in range(16):
                bit = 8 * (r // 4) + r % 4
                t = vT + (r & 3)
                A(f"v_bfe_i32 v{t}, v{vM+4+T}, {bit}, 1")
                A(f"v_bfi_b32 v{vS+T*16+r}, v{t}, v{vS+T*16+r}, v{vM+6}")
        rowmax(vS, 32, vM, vT)
        for r in range(32):
            A(f"v_sub_f32 v{vS+r}, v{vS+r}, v{vM}")
        for r in range(32):
            A(f"v_exp_f32 v{vS+r}, v{vS+r}")
        A("s_nop 0")
        for T in range(2):
            for j in range(8): A(f"v_cvt_pk_bf16_f32 v{vP+j}, v{vS+T*16+2*j}, v{vS+T*16+2*j+1}")
            A("s_nop 1")
            c = "0" if T == 0 else vr(vO, 16)
            A(f"v_mfma_f32_32x32x16_bf16 {vr(vO,16)}, {vr(vV+T*8,4)}, {vr(vP,4)}, {c}")
            A(f"v_mfma_f32_32x32x16_bf16 {vr(vO,16)}, {vr(vV+T*8+4,4)}, {vr(vP+4,4)}, {vr(vO,16)}")
        A("s_nop 15")
        get_l()
        A("s_waitcnt lgkmcnt(0)")
        store_o(sAH, sAQ)
        srds(1)
    for r in range(16): A(f"v_mov_b32 v{vO+r}, 0")
    A(f"v_mov_b32 v{vKc}, v{vLa}")
    A(f"v_add_u32 v{vKn}, {BUFB}, v{vLa}")
    A(f"v_add_u32 v{vVc}, {HALF}, v{vVa}")
    A(f"s_mov_b32 s{sBN}, {BUFB}")
    A(f"s_waitcnt vmcnt({NCH})")
    for r in range(8): A(f"v_mov_b32 v{vQ0+r}, v{vQB+r}")
    A("s_barrier")

    def kread(reg, i, st):
        A(f"ds_read_b128 {vr(vK+st*8,4)}, v{reg} offset:{i*TILE_B}")
        A(f"s_mov_b64 exec, {sr(sMLO,2)}")
        A(f"ds_read_b128 {vr(vK+st*8+4,4)}, v{reg} offset:{i*TILE_B + 1024}")
    def vread(i, st):
        A(f"s_mov_b64 exec, {sr(sMV,2)}")
        A(f"ds_read_b128 {vr(vV+st*8,4)}, v{vVc} offset:{i*TILE_B}")
        A(f"ds_read_b128 {vr(vV+st*8+4,4)}, v{vVc} offset:{i*TILE_B + 768}")
        A("s_mov_b64 exec, -1")

    kread(vKc, 0, 0)
    A("s_mov_b64 exec, -1")
    A("s_waitcnt lgkmcnt(0)")
    qk(0, 0)
    A("s_nop 15")
    rowmax(vS, 16, vM, vT)
    A(f"v_sub_f32 v{vM}, 0, v{vM}")
    A(f"s_mov_b64 exec, {sr(sMLO,2)}")
    A(f"v_cvt_pk_bf16_f32 v{vQ1+2}, v{vM}, 0")
    A("s_mov_b64 exec, -1")
    kread(vKc, 1, 1)
    A("s_mov_b64 exec, -1")
    A("s_nop 1")
    qk(0, 0)
    A(f"s_mov_b32 s{sCNT}, 0")
    lab(f"{P}_loop")
    for i in range(TPS):
        st = i & 1
        if i == TPS - 2 and 'nobar' not in EXP:
            A("s_waitcnt vmcnt(0)")
            A("s_barrier")
            dma()
        if 'nolds' not in EXP:
            if i + 2 < TPS: kread(vKc, i + 2, st)
            else: kread(vKn, i + 2 - TPS, st)
            vread(i, st)
            A("s_waitcnt lgkmcnt(4)")
        S = vS + st * 16
        Sn = vS + (st ^ 1) * 16
        M = (lambda x: None) if 'nomfma' in EXP else A
        E = (lambda r: A(f"v_exp_f32 v{r}, v{r}"))
        CV = (lambda j: A(f"v_cvt_pk_bf16_f32 v{vP+j}, v{S+2*j}, v{S+2*j+1}"))
        M(f"v_mfma_f32_32x32x16_bf16 {vr(Sn,16)}, {vr(vK+(st^1)*8,4)}, {vr(vQ0,4)}, 0")
        for r in range(0, 8): E(S+r)
        M(f"v_mfma_f32_32x32x16_bf16 {vr(Sn,16)}, {vr(vK+(st^1)*8+4,4)}, {vr(vQ1,4)}, {vr(Sn,16)}")
        for j in range(4): CV(j)
        for r in range(8, 16): E(S+r)
        if 'nolds' not in EXP: A("s_waitcnt lgkmcnt(0)")
        M(f"v_mfma_f32_32x32x16_bf16 {vr(vO,16)}, {vr(vV+st*8,4)}, {vr(vP,4)}, {vr(vO,16)}")
        for j in range(4, 8): CV(j)
        if i == TPS - 1:
            A(f"v_mov_b32 v{vKc}, v{vKn}")
            A(f"v_add_u32 v{vVc}, s{sBN}, v{vVa}")
            A(f"v_add_u32 v{vVc}, {HALF}, v{vVc}")
            A(f"s_add_u32 s{sBN}, s{sBN}, {BUFB}")
            A(f"s_cmp_ge_u32 s{sBN}, {NBUF*BUFB}")
            A(f"s_cselect_b32 s{sBN}, 0, s{sBN}")
            A(f"v_add_u32 v{vKn}, s{sBN}, v{vLa}")
        else:
            A("s_nop 1")
        M(f"v_mfma_f32_32x32x16_bf16 {vr(vO,16)}, {vr(vV+st*8+4,4)}, {vr(vP+4,4)}, {vr(vO,16)}")
    A(f"s_add_u32 s{sCNT}, s{sCNT}, 1")
    A(f"s_cmp_lt_u32 s{sCNT}, {NSTG}")
    A(f"s_cbranch_scc1 {P}_loop")
    A("s_nop 15")
    get_l()
    A(f"v_max3_f32 v{vT+1}, abs(v{vO}), abs(v{vO+1}), abs(v{vO+2})")
    for k in range(3, 11, 2):
        A(f"v_max3_f32 v{vT+1}, v{vT+1}, abs(v{vO+k}), abs(v{vO+k+1})")
    A(f"v_max_f32 v{vT+1}, v{vT+1}, abs(v{vO+11})")
    A(f"s_mov_b32 s{sT0}, 0x7b800000")
    A(f"s_mov_b32 s{sT1}, 0x71800000")
    A("s_waitcnt lgkmcnt(0)")
    A(f"v_cmp_ngt_f32 vcc, s{sT0}, v{vT+1}")
    A(f"v_cmp_ngt_f32 {sr(sAH,2)}, s{sT1}, v{vM+1}")
    A(f"s_or_b64 vcc, vcc, {sr(sAH,2)}")
    A(f"s_cbranch_vccnz {P}_fallback")
    lab(f"{P}_store")
    store_o(sHD, sQT)
    if 'stamp' in EXP:
        A("s_memtime s[68:69]")
        A("s_memrealtime s[70:71]")
        A("s_getreg_b32 s72, hwreg(HW_REG_HW_ID)")
        A("s_getreg_b32 s73, hwreg(HW_REG_XCC_ID)")
        A("s_waitcnt lgkmcnt(0)")
        for j, sg in enumerate((60,61,62,63,68,69,70,71,72,73)):
            A(f"v_mov_b32 v{20+j}, s{sg}")
        A(f"s_mul_i32 s74, s2, {NWAVE}")
        A(f"s_add_u32 s74, s74, s{sWV}")
        A("s_lshl_b32 s74, s74, 6")
        A("s_add_u32 s74, s74, 0x3000000")
        A("v_mov_b32 v30, 0")
        A("s_mov_b64 exec, 1")
        A("buffer_store_dwordx4 v[20:23], v30, s[64:67], s74 offen")
        A("buffer_store_dwordx4 v[24:27], v30, s[64:67], s74 offen offset:16")
        A("buffer_store_dwordx2 v[28:29], v30, s[64:67], s74 offen offset:32")
    A("s_endpgm")

    lab(f"{P}_fallback")
    A(f"v_mov_b32 v{vQ1+2}, 0")
    A(f"v_mov_b32 v{vM}, 0xff800000")
    for r in range(16): A(f"v_mov_b32 v{vO+r}, 0")
    A(f"s_mul_i32 s{sDO}, s{sHD}, {HEAD_B}")
    A(f"s_mov_b32 s{sCNT}, 0")
    lab(f"{P}_fbloop")
    gload_kv(0, sDO)
    A("s_waitcnt vmcnt(0)")
    qk(0, 0)
    A("s_nop 15")
    rowmax(vS, 16, vM+2, vT)
    A(f"v_max_f32 v{vM+2}, v{vM+2}, v{vM}")
    A(f"v_sub_f32 v{vM+3}, v{vM}, v{vM+2}")
    A(f"v_exp_f32 v{vM+3}, v{vM+3}")
    A(f"v_mov_b32 v{vM}, v{vM+2}")
    for r in range(16): A(f"v_mul_f32 v{vO+r}, v{vO+r}, v{vM+3}")
    for r in range(16):
        A(f"v_sub_f32 v{vS+r}, v{vS+r}, v{vM}")
        A(f"v_exp_f32 v{vS+r}, v{vS+r}")
    A("s_nop 0")
    for j in range(8): A(f"v_cvt_pk_bf16_f32 v{vP+j}, v{vS+2*j}, v{vS+2*j+1}")
    A("s_nop 1")
    A(f"v_mfma_f32_32x32x16_bf16 {vr(vO,16)}, {vr(vV,4)}, {vr(vP,4)}, {vr(vO,16)}")
    A(f"v_mfma_f32_32x32x16_bf16 {vr(vO,16)}, {vr(vV+4,4)}, {vr(vP+4,4)}, {vr(vO,16)}")
    A(f"s_add_u32 s{sDO}, s{sDO}, {TILE_B}")
    A(f"s_add_u32 s{sCNT}, s{sCNT}, 1")
    A(f"s_cmp_lt_u32 s{sCNT}, 64")
    A("s_nop 15")
    A(f"s_cbranch_scc1 {P}_fbloop")
    get_l()
    A("s_waitcnt lgkmcnt(0)")
    A(f"s_branch {P}_store")
    lab(f"{P}_end")
    A("s_endpgm")
    kernel_desc(name, NV, 80)
    return NBUF * BUFB, NB, NWAVE * 64

def main():
    k1, k2, k3 = "qkv_kernel", "att_kernel", "out_kernel"
    l1, g1, b1 = gemm("qkv", k1)
    l2, g2, b2 = attn(k2)
    l3, g3, b3 = gemm("out", k3)
    hdr = open(f"cdna_kernels/{NAME}.s.ref").read().split("; Override launch")[0]
    out = hdr
    out += f"; @launch kernel={k1} grid=({g1},1,1) block=({b1},1,1) lds={l1}\n"
    out += f"; @launch kernel={k2} grid=({g2},1,1) block=({b2},1,1) lds={l2}\n"
    out += f"; @launch kernel={k3} grid=({g3},1,1) block=({b3},1,1) lds={l3}\n"
    out += '.amdgcn_target "amdgcn-amd-amdhsa--gfx950"\n.text\n'
    out += "\n".join(L) + "\n"
    out += '.section .rodata,"a"\n.p2align 6\n' + "\n".join(DESC) + "\n"
    dst = sys.argv[1] if len(sys.argv) > 1 else f"cdna_kernels/{NAME}.s"
    open(dst, "w").write(out)
main()
```

```python
import math, sys, os
EXP=os.environ.get('EXP','')

NAME = "concat_heads__sliding_local_dilated__mha_block__prompt"
L = []
def A(s): L.append("    " + s)
def lab(s): L.append(s + ":")
def C(s): L.append("    ; " + s)

TILE_B = 1536
HEAD_B = 64 * TILE_B
REG_Q, REG_K, REG_V, REG_O = 0, 0x300000, 0x600000, 0x900000
BR_SHIFT = 24
CSCALE = (20 ** -0.5) * math.log2(math.e)
import struct
def f2u(x): return struct.unpack("<I", struct.pack("<f", x))[0]

def vr(b, n): return f"v[{b}:{b+n-1}]"
def sr(b, n): return f"s[{b}:{b+n-1}]"

def kernel_header(name):
    L.append(".p2align 8")
    L.append(f".globl {name}")
    L.append(f".type {name},@function")
    lab(name)

DESC = []
def kernel_desc(name, nv, ns):
    nv4 = (nv + 3) // 4 * 4
    DESC.append(f""".amdhsa_kernel {name}
  .amdhsa_next_free_vgpr {nv}
  .amdhsa_next_free_sgpr {ns}
  .amdhsa_accum_offset {nv4}
  .amdhsa_group_segment_fixed_size 0
  .amdhsa_kernarg_size 72
  .amdhsa_user_sgpr_count 2
  .amdhsa_user_sgpr_kernarg_segment_ptr 1
  .amdhsa_system_sgpr_workgroup_id_x 1
.end_amdhsa_kernel""")

def gemm(kind, name):
    if kind == "qkv":
        BM, BN, WGM, WGN, NBUF = 256, 128, 4, 2, 3
        wstride, nwg = 3840, 240
    else:
        BM, BN, WGM, WGN, NBUF = 64, 160, 1, 5, 5
        wstride, nwg = 1280, 256
    NW = WGM * WGN
    NXF = BM // WGM // 32
    NFF = BN // WGN // 32
    XB = BM * 128
    WB = (BN // 32) * 4096
    STG = XB + WB
    nxi_tot, nwi_tot = BM // 8, (BN // 32) * 4
    NX = -(-nxi_tot // NW)
    if NX % 2: NX += 1
    NWI = -(-nwi_tot // NW)
    ND = NX + NWI
    D = NBUF - 1
    NST = 10
    P = name[:3]
    sBR, sMT, sNT, sWV = 22, 23, 24, 25
    sXS, sWS, sOS = 28, 32, 36
    sX = 40
    sW = sX + NX
    sLX = sW + NWI
    sLW = sLX + NX
    sT0 = sLW + NWI
    sT1, sWM, sWN = sT0 + 1, sT0 + 2, sT0 + 3
    sE = sT0 + 4
    NS = sE + 10
    vXE, vXO, vWs = 1, 2, 3
    vT = 4
    vXrd = 10
    vWrd = vXrd + NBUF * 4
    vXf = (vWrd + NBUF * NFF + 3) // 4 * 4
    vWf = vXf + 2 * NXF * 4
    vAcc = vWf + 2 * NFF * 4
    nacc = NXF * NFF * 16
    vE = vAcc + nacc
    NV = vE + 24

    STAMP = ('gst_'+kind) in EXP
    nst_ = [0]
    def stamp():
        if STAMP:
            A(f"s_memtime s[{80+2*nst_[0]}:{81+2*nst_[0]}]")
            nst_[0] += 1
    def dump():
        if STAMP:
            stamp()
            A("s_waitcnt lgkmcnt(0)")
            A("s_mov_b32 s76, s20")
            A("s_and_b32 s77, s21, 0xffff")
            A("s_mov_b32 s78, 0x10000000")
            A("s_mov_b32 s79, 0x00020000")
            for j in range(16):
                A(f"v_mov_b32 v{20+j}, s{80+j}")
            A(f"s_lshl_b32 s74, s2, 3")
            A(f"s_add_u32 s74, s74, s{sWV}")
            A("s_lshl_b32 s74, s74, 6")
            A("s_add_u32 s74, s74, 0x3000000")
            A("v_mov_b32 v40, 0")
            A("s_mov_b64 exec, 1")
            for j in range(4):
                A(f"buffer_store_dwordx4 v[{20+4*j}:{23+4*j}], v40, s[76:79], s74 offen offset:{16*j}")
            nst_[0] -= 1
    kernel_header(name)
    A(f"s_cmp_ge_u32 s2, {nwg}")
    A(f"s_cbranch_scc1 {P}_end")
    stamp()
    A("s_load_dwordx16 s[4:19], s[0:1], 0")
    A("s_load_dwordx2 s[20:21], s[0:1], 64")
    A("s_and_b32 s26, s2, 7")
    A("s_lshr_b32 s27, s2, 3")
    A(f"s_lshr_b32 s{sBR}, s26, 2")
    A("s_and_b32 s26, s26, 3")
    if kind == "qkv":
        A("s_lshl_b32 s26, s26, 1")
        A(f"s_and_b32 s{sMT}, s27, 1")
        A(f"s_add_u32 s{sMT}, s{sMT}, s26")
        A(f"s_lshr_b32 s{sNT}, s27, 1")
    else:
        A("s_lshl_b32 s26, s26, 3")
        A(f"s_and_b32 s{sMT}, s27, 7")
        A(f"s_add_u32 s{sMT}, s{sMT}, s26")
        A(f"s_lshr_b32 s{sNT}, s27, 3")
    A("v_lshrrev_b32 v1, 6, v0")
    A("v_and_b32 v0, 63, v0")
    A(f"v_readfirstlane_b32 s{sWV}, v1")
    A("s_waitcnt lgkmcnt(0)")
    if WGN == 2:
        A(f"s_lshr_b32 s{sWM}, s{sWV}, 1")
        A(f"s_and_b32 s{sWN}, s{sWV}, 1")
    else:
        A(f"s_mov_b32 s{sWM}, 0")
        A(f"s_mov_b32 s{sWN}, s{sWV}")
    A(f"s_lshl_b32 s{sT0}, s{sBR}, {BR_SHIFT}")
    A(f"s_cmp_eq_u32 s{sBR}, 0")
    if kind == "qkv":
        A(f"s_cselect_b32 s{sXS}, s4, s10")
        A(f"s_cselect_b32 s{sXS+1}, s5, s11")
        A(f"s_cselect_b32 s{sWS}, s6, s12")
        A(f"s_cselect_b32 s{sWS+1}, s7, s13")
        A(f"s_add_u32 s{sOS}, s20, s{sT0}")
        A(f"s_addc_u32 s{sOS+1}, s21, 0")
        A(f"s_mov_b32 s{sXS+2}, 2621440")
        A(f"s_mov_b32 s{sWS+2}, 2457600")
        A(f"s_mov_b32 s{sOS+2}, 0x900000")
    else:
        A(f"s_cselect_b32 s{sWS}, s8, s14")
        A(f"s_cselect_b32 s{sWS+1}, s9, s15")
        A(f"s_add_u32 s{sT0}, s{sT0}, {REG_O}")
        A(f"s_add_u32 s{sXS}, s20, s{sT0}")
        A(f"s_addc_u32 s{sXS+1}, s21, 0")
        A(f"s_mov_b32 s{sOS}, s16")
        A(f"s_mov_b32 s{sOS+1}, s17")
        A(f"s_mov_b32 s{sXS+2}, 2621440")
        A(f"s_mov_b32 s{sWS+2}, 819200")
        A(f"s_mov_b32 s{sOS+2}, 5242880")
    for s in (sXS, sWS, sOS):
        A(f"s_and_b32 s{s+1}, s{s+1}, 0xffff")
        A(f"s_mov_b32 s{s+3}, 0x00020000")
    A(f"v_lshrrev_b32 v{vT}, 3, v0")
    A(f"v_mul_u32_u24 v{vXE}, 1280, v{vT}")
    A(f"v_and_b32 v{vT}, 7, v0")
    A(f"v_lshrrev_b32 v{vT+1}, 4, v0")
    A(f"v_xor_b32 v{vT}, v{vT}, v{vT+1}")
    A(f"v_lshl_add_u32 v{vXE}, v{vT}, 4, v{vXE}")
    A(f"v_xor_b32 v{vXO}, 64, v{vXE}")
    A(f"v_lshrrev_b32 v{vT}, 2, v0")
    A(f"v_mul_u32_u24 v{vWs}, {wstride}, v{vT}")
    A(f"v_and_b32 v{vT}, 3, v0")
    A(f"v_lshl_add_u32 v{vWs}, v{vT}, 4, v{vWs}")
    for j in range(NX):
        A(f"s_mul_i32 s{sT0}, s{sWV}, {NX}")
        A(f"s_add_u32 s{sT0}, s{sT0}, {j}")
        if NX * NW != nxi_tot:
            assert nxi_tot & (nxi_tot - 1) == 0
            A(f"s_and_b32 s{sT0}, s{sT0}, {nxi_tot-1}")
        A(f"s_lshl_b32 s{sLX+j}, s{sT0}, 10")
        A(f"s_mul_i32 s{sT1}, s{sMT}, {BM//8}")
        A(f"s_add_u32 s{sT0}, s{sT0}, s{sT1}")
        A(f"s_mul_i32 s{sX+j}, s{sT0}, {8*1280}")
    assert NWI * NW == nwi_tot
    for j in range(NWI):
        A(f"s_mul_i32 s{sT0}, s{sWV}, {NWI}")
        A(f"s_add_u32 s{sT0}, s{sT0}, {j}")
        A(f"s_lshl_b32 s{sLW+j}, s{sT0}, 10")
        A(f"s_add_u32 s{sLW+j}, s{sLW+j}, {XB}")
        A(f"s_and_b32 s{sT1}, s{sT0}, 3")
        A(f"s_mul_i32 s{sT1}, s{sT1}, {16*wstride}")
        A(f"s_lshr_b32 s{sT0}, s{sT0}, 2")
        A(f"s_lshl_b32 s{sT0}, s{sT0}, 6")
        A(f"s_add_u32 s{sT1}, s{sT1}, s{sT0}")
        A(f"s_mul_i32 s{sT0}, s{sNT}, {BN*2}")
        A(f"s_add_u32 s{sW+j}, s{sT1}, s{sT0}")

    ROT = 'norot' not in EXP
    sK, sDX, sDW = sE + 6, sE + 7, sE + 8
    if ROT:
        A(f"s_add_u32 s{sK}, s{sNT}, s{sMT}")
        for _ in range(4):
            A(f"s_cmp_ge_u32 s{sK}, 10")
            A(f"s_cselect_b32 s{sT0}, 10, 0")
            A(f"s_sub_u32 s{sK}, s{sK}, s{sT0}")
        A(f"s_lshl_b32 s{sT0}, s{sK}, 7")
        A(f"s_mul_i32 s{sT1}, s{sK}, {64*wstride}")
        for j in range(NX): A(f"s_add_u32 s{sX+j}, s{sX+j}, s{sT0}")
        for j in range(NWI): A(f"s_add_u32 s{sW+j}, s{sW+j}, s{sT1}")
    def issue_groups(stage):
        buf = stage % NBUF
        G = []
        if 'gnodma' in EXP and stage >= 2: return []
        g = []
        if ROT:
            g += [f"s_add_u32 s{sK}, s{sK}, 1", f"s_cmp_eq_u32 s{sK}, 10",
                  f"s_cselect_b32 s{sDX}, {(-1280) & 0xffffffff}, 0",
                  f"s_cselect_b32 s{sDW}, {(-10*64*wstride) & 0xffffffff}, 0",
                  f"s_cselect_b32 s{sK}, 0, s{sK}",
                  f"s_add_u32 s{sDX}, s{sDX}, 128", f"s_add_u32 s{sDW}, s{sDW}, {64*wstride}"]
        for j in range(NX):
            g += [f"s_add_u32 m0, s{sLX+j}, {buf*STG}", "s_nop 0",
                  f"buffer_load_dwordx4 v{vXE if j%2==0 else vXO}, {sr(sXS,4)}, s{sX+j} offen lds",
                  f"s_add_u32 s{sX+j}, s{sX+j}, " + (f"s{sDX}" if ROT else "128")]
            G.append(g); g = []
        for j in range(NWI):
            g += [f"s_add_u32 m0, s{sLW+j}, {buf*STG}", "s_nop 0",
                  f"buffer_load_dwordx4 v{vWs}, {sr(sWS,4)}, s{sW+j} offen lds",
                  f"s_add_u32 s{sW+j}, s{sW+j}, " + (f"s{sDW}" if ROT else f"{64*wstride}")]
            G.append(g); g = []
        return G
    def issue(stage):
        for g in issue_groups(stage):
            for x in g: A(x)

    issue(0)
    A(f"v_and_b32 v{vT}, 31, v0")
    A(f"s_mul_i32 s{sT0}, s{sWM}, {BM//WGM}")
    A(f"v_add_u32 v{vT}, s{sT0}, v{vT}")
    A(f"v_lshlrev_b32 v{vT}, 7, v{vT}")
    A(f"v_bfe_u32 v{vT+1}, v0, 1, 3")
    A(f"v_lshrrev_b32 v{vT+2}, 5, v0")
    for ks in range(4):
        A(f"v_add_u32 v{vT+3}, {2*ks}, v{vT+2}")
        A(f"v_xor_b32 v{vT+3}, v{vT+3}, v{vT+1}")
        A(f"v_lshl_add_u32 v{vXrd+ks}, v{vT+3}, 4, v{vT}")
        for b in range(1, NBUF):
            A(f"v_add_u32 v{vXrd+b*4+ks}, {b*STG}, v{vXrd+ks}")
    A(f"v_bfe_u32 v{vT}, v0, 2, 2")
    A(f"v_lshl_add_u32 v{vT+1}, v{vT+2}, 3, v{vT}")
    A(f"v_lshlrev_b32 v{vT+1}, 6, v{vT+1}")
    A(f"v_bfe_u32 v{vT+3}, v0, 4, 1")
    A(f"v_lshl_add_u32 v{vT+1}, v{vT+3}, 5, v{vT+1}")
    A(f"v_and_b32 v{vT+3}, 3, v0")
    A(f"v_lshl_add_u32 v{vT+1}, v{vT+3}, 3, v{vT+1}")
    A(f"s_mul_i32 s{sT0}, s{sWN}, {NFF*4096}")
    A(f"s_add_u32 s{sT0}, s{sT0}, {XB}")
    for b in range(NBUF):
        for fi in range(NFF):
            A(f"s_add_u32 s{sT1}, s{sT0}, {b*STG + fi*4096}")
            A(f"v_add_u32 v{vWrd+b*NFF+fi}, s{sT1}, v{vT+1}")
    for r in range(nacc):
        A(f"v_mov_b32 v{vAcc+r}, 0")
    for st in range(1, D): issue(st)

    def acc(xi, fi): return vAcc + (xi * NFF + fi) * 16
    def reads(buf, ks, st):
        if 'gnolds' in EXP: return
        for xi in range(NXF):
            A(f"ds_read_b128 {vr(vXf+(st*NXF+xi)*4,4)}, v{vXrd+buf*4+ks} offset:{xi*4096}")
        for fi in range(NFF):
            for i in range(2):
                A(f"ds_read_b64_tr_b16 {vr(vWf+(st*NFF+fi)*4+2*i,2)}, v{vWrd+buf*NFF+fi} offset:{ks*1024 + i*256}")
    nrd = NXF + 2 * NFF
    def compute(buf, vorient, G):
        G = list(G)
        nm = NXF * NFF * 4
        slots = {}
        for gi in range(len(G)):
            slots.setdefault((gi * nm) // len(G), []).append(G[gi])
        reads(buf, 0, 0)
        mi = 0
        for ks in range(4):
            st = ks & 1
            if ks < 3:
                reads(buf, ks + 1, st ^ 1)
                A(f"s_waitcnt lgkmcnt({nrd})")
            else:
                A("s_waitcnt lgkmcnt(0)")
            for xi in range(NXF):
                for fi in range(NFF):
                    x = vr(vXf + (st * NXF + xi) * 4, 4)
                    w = vr(vWf + (st * NFF + fi) * 4, 4)
                    a = vr(acc(xi, fi), 16)
                    if 'gnomfma' in EXP: pass
                    elif vorient:
                        A(f"v_mfma_f32_32x32x16_bf16 {a}, {x}, {w}, {a}")
                    else:
                        A(f"v_mfma_f32_32x32x16_bf16 {a}, {w}, {x}, {a}")
                    for g in slots.get(mi, []):
                        for xx in g: A(xx)
                    mi += 1

    def mainloop(vorient):
        for s in range(NST):
            A(f"s_waitcnt vmcnt({ND*min(D-1, NST-1-s)})")
            A("s_barrier")
            if s in (0, 1, 5):
                if vorient and s == 0: nst_[0] = 1
                stamp()
            compute(s % NBUF, vorient, issue_groups(s + D) if s + D < NST else [])
        stamp()
        A("s_nop 15")

    if kind == "out":
        mainloop(False)
        A(f"v_and_b32 v{vT}, 31, v0")
        A(f"v_mul_u32_u24 v{vT}, 2560, v{vT}")
        A(f"v_lshrrev_b32 v{vT+1}, 5, v0")
        A(f"v_lshl_add_u32 v{vT}, v{vT+1}, 3, v{vT}")
        A(f"s_mul_i32 s{sT0}, s{sMT}, {64*2560}")
        A(f"s_mul_i32 s{sT1}, s{sBR}, 1280")
        A(f"s_add_u32 s{sT0}, s{sT0}, s{sT1}")
        A(f"s_mul_i32 s{sT1}, s{sNT}, {BN*2}")
        A(f"s_add_u32 s{sT0}, s{sT0}, s{sT1}")
        A(f"s_lshl_b32 s{sT1}, s{sWN}, 6")
        A(f"s_add_u32 s{sT0}, s{sT0}, s{sT1}")
        A(f"s_add_u32 s{sT1}, s{sT0}, {32*2560}")
        for xi in range(2):
            for g in range(4):
                a = acc(xi, 0) + 4 * g
                e = vE + ((xi * 4 + g) % 4) * 2
                A(f"v_cvt_pk_bf16_f32 v{e}, v{a}, v{a+1}")
                A(f"v_cvt_pk_bf16_f32 v{e+1}, v{a+2}, v{a+3}")
                A(f"buffer_store_dwordx2 {vr(e,2)}, v{vT}, {sr(sOS,4)}, s{sT0+xi} offen offset:{g*16}")
    else:
        A(f"s_cmp_ge_u32 s{sNT}, 10")
        A(f"s_cbranch_scc1 {P}_vpath")
        mainloop(False)
        A(f"s_cmp_ge_u32 s{sNT}, 5")
        A(f"s_cselect_b32 s{sT0}, 5, 0")
        A(f"s_cselect_b32 s{sE}, {REG_K}, 0")
        A(f"s_cselect_b32 s{sE+1}, 1.0, {hex(f2u(CSCALE))}")
        A(f"s_sub_u32 s{sT0}, s{sNT}, s{sT0}")
        A(f"s_lshl_b32 s{sT0}, s{sT0}, 7")
        A(f"s_lshl_b32 s{sT1}, s{sWN}, 6")
        A(f"s_add_u32 s{sT0}, s{sT0}, s{sT1}")
        A(f"s_mul_i32 s{sT1}, s{sMT}, {WGM}")
        A(f"s_add_u32 s{sT1}, s{sT1}, s{sWM}")
        A(f"s_mul_i32 s{sT1}, s{sT1}, {2*TILE_B}")
        A(f"s_add_u32 s{sE}, s{sE}, s{sT1}")
        for r in range(nacc):
            A(f"v_mul_f32 v{vAcc+r}, s{sE+1}, v{vAcc+r}")
        A(f"v_lshrrev_b32 v{vT}, 5, v0")
        A(f"v_lshl_add_u32 v{vT}, v{vT}, 2, s{sT0}")
        A(f"v_and_b32 v{vT+1}, 31, v0")
        A(f"v_lshlrev_b32 v{vT+1}, 4, v{vT+1}")
        A(f"v_mov_b32 v{vE+8}, 0x3f80")
        A(f"v_mov_b32 v{vE+9}, 0")
        A(f"s_mov_b32 s{sE+2}, {HEAD_B}")
        for fi in range(2):
            for g in range(4):
                A(f"v_add_u32 v{vT+2}, {fi*32+g*8}, v{vT}")
                A(f"v_mul_u32_u24 v{vT+3}, 3277, v{vT+2}")
                A(f"v_lshrrev_b32 v{vT+3}, 16, v{vT+3}")
                A(f"v_mul_u32_u24 v{vT+4}, 20, v{vT+3}")
                A(f"v_sub_u32 v{vT+2}, v{vT+2}, v{vT+4}")
                A(f"v_mul_lo_u32 v{vT+3}, v{vT+3}, s{sE+2}")
                A(f"v_add_u32 v{vT+3}, v{vT+3}, v{vT+1}")
                A(f"v_lshrrev_b32 v{vT+4}, 3, v{vT+2}")
                A(f"v_lshl_add_u32 v{vT+3}, v{vT+4}, 9, v{vT+3}")
                A(f"v_and_b32 v{vT+4}, 7, v{vT+2}")
                A(f"v_lshl_add_u32 v{vT+3}, v{vT+4}, 1, v{vT+3}")
                A(f"v_cmp_eq_u32 vcc, 16, v{vT+2}")
                for xi in range(2):
                    a = acc(xi, fi) + 4 * g
                    e = vE + xi * 2
                    A(f"v_cvt_pk_bf16_f32 v{e}, v{a}, v{a+1}")
                    A(f"v_cvt_pk_bf16_f32 v{e+1}, v{a+2}, v{a+3}")
                    A(f"buffer_store_dwordx2 {vr(e,2)}, v{vT+3}, {sr(sOS,4)}, s{sE} offen offset:{xi*TILE_B}")
                A(f"s_and_saveexec_b64 {sr(sE+4,2)}, vcc")
                for xi in range(2):
                    A(f"buffer_store_dwordx2 {vr(vE+8,2)}, v{vT+3}, {sr(sOS,4)}, s{sE} offen offset:{xi*TILE_B+8}")
                A(f"s_mov_b64 exec, {sr(sE+4,2)}")
        dump()
        A("s_endpgm")
        lab(f"{P}_vpath")
        mainloop(True)
        A(f"s_sub_u32 s{sT0}, s{sNT}, 10")
        A(f"s_lshl_b32 s{sT0}, s{sT0}, 7")
        A(f"s_lshl_b32 s{sT1}, s{sWN}, 6")
        A(f"s_add_u32 s{sT0}, s{sT0}, s{sT1}")
        A(f"s_mul_i32 s{sT1}, s{sMT}, {WGM}")
        A(f"s_add_u32 s{sT1}, s{sT1}, s{sWM}")
        A(f"s_mul_i32 s{sT1}, s{sT1}, {2*TILE_B}")
        A(f"s_add_u32 s{sE}, s{sT1}, {REG_V}")
        A(f"s_mov_b32 s{sE+2}, {HEAD_B}")
        A(f"v_and_b32 v{vT}, 31, v0")
        A(f"v_add_u32 v{vT}, s{sT0}, v{vT}")
        A(f"v_lshrrev_b32 v{vT+1}, 5, v0")
        A(f"v_mul_u32_u24 v{vT+1}, 384, v{vT+1}")
        for fi in range(2):
            A(f"v_add_u32 v{vT+2}, {fi*32}, v{vT}")
            A(f"v_mul_u32_u24 v{vT+3}, 3277, v{vT+2}")
            A(f"v_lshrrev_b32 v{vT+3}, 16, v{vT+3}")
            A(f"v_mul_u32_u24 v{vT+4}, 20, v{vT+3}")
            A(f"v_sub_u32 v{vT+2}, v{vT+2}, v{vT+4}")
            A(f"v_mul_lo_u32 v{vT+3}, v{vT+3}, s{sE+2}")
            A(f"v_add_u32 v{vT+3}, v{vT+3}, v{vT+1}")
            A(f"v_lshl_add_u32 v{vT+3}, v{vT+2}, 4, v{vT+3}")
            A(f"v_cmp_eq_u32 vcc, 16, v{vT+2}")
            A(f"v_mov_b32 v{vT+5}, 0x3f803f80")
            A("s_nop 1")
            A(f"v_cndmask_b32 v{vE+16}, 0, v{vT+5}, vcc")
            A(f"v_mov_b32 v{vE+17}, v{vE+16}")
            A(f"v_mov_b32 v{vE+18}, v{vE+16}")
            A(f"v_mov_b32 v{vE+19}, v{vE+16}")
            A(f"v_cmp_le_u32 vcc, 16, v{vT+2}")
            for xi in range(2):
                for m in range(2):
                    a = acc(xi, fi) + 8 * m
                    e = vE + (xi * 2 + m) * 4
                    for j in range(4):
                        A(f"v_cvt_pk_bf16_f32 v{e+j}, v{a+2*j}, v{a+2*j+1}")
                    A(f"buffer_store_dwordx4 {vr(e,4)}, v{vT+3}, {sr(sOS,4)}, s{sE} offen offset:{xi*TILE_B+m*768}")
            A(f"s_and_saveexec_b64 {sr(sE+4,2)}, vcc")
            for xi in range(2):
                for m in range(2):
                    A(f"buffer_store_dwordx4 {vr(vE+16,4)}, v{vT+3}, {sr(sOS,4)}, s{sE} offen offset:{xi*TILE_B+m*768+64}")
            A(f"s_mov_b64 exec, {sr(sE+4,2)}")
    dump()
    lab(f"{P}_end")
    A("s_endpgm")
    assert (sE + 4) % 2 == 0
    kernel_desc(name, NV, 100 if STAMP else NS)
    return STG * NBUF, nwg, NW * 64

def attn(name):
    NWAVE = 8 if 'w4' not in EXP else 4
    TPS = 8 if NWAVE == 8 else 4
    NBUF = 3
    NSTG = 64 // TPS
    NB = 2048 // NWAVE
    HALF = TPS * TILE_B
    BUFB = 2 * HALF
    NCH = BUFB // 1024 // NWAVE
    assert NCH * NWAVE * 1024 == BUFB
    P = "att"
    sHD, sQT, sWV, sT0, sT1, sCNT = 22, 23, 25, 26, 27, 24
    sQS, sKS, sVS, sOS, sDS = 28, 32, 36, 40, 44
    sDO, sM0 = 48, 49
    sMLO, sMV = 50, 52
    sUO, sUP, sBW, sBN = 54, 55, 56, 57
    sAH, sAQ = 58, 59
    sAM, sOA = 19, 76
    sAH2, sAQ2 = 17, 18
    vLa, vVa = 1, 2
    vT = 3
    vKc, vKn = 10, 11
    vQ0, vQ1 = 12, 16
    vK = 20
    vV = 36
    vS = 52
    vP = 84
    vO = 92
    vM = 108
    vQB = 116
    vVc = 124
    vAQ, vAK, vAV = 128, 136, 152
    vPF = 168
    NV = 172

    kernel_header(name)
    A(f"s_cmp_ge_u32 s2, {NB}")
    A(f"s_cbranch_scc1 {P}_end")
    A("s_load_dwordx2 s[20:21], s[0:1], 64")
    A("s_load_dwordx2 s[4:5], s[0:1], 16")
    A("s_load_dwordx2 s[6:7], s[0:1], 40")
    if 'stamp' in EXP:
        A("s_memtime s[60:61]")
        A("s_memrealtime s[62:63]")
        A("s_waitcnt lgkmcnt(0)")
        A("s_mov_b32 s64, s20")
        A("s_and_b32 s65, s21, 0xffff")
        A("s_mov_b32 s66, 0x10000000")
        A("s_mov_b32 s67, 0x00020000")
    A("v_lshrrev_b32 v1, 6, v0")
    A("v_and_b32 v0, 63, v0")
    A(f"v_readfirstlane_b32 s{sWV}, v1")
    A(f"s_mov_b32 s{sMLO}, -1")
    A(f"s_mov_b32 s{sMLO+1}, 0")
    A(f"s_mov_b32 s{sMV}, 0x00ffffff")
    A(f"s_mov_b32 s{sMV+1}, 0x00ffffff")
    A(f"v_lshlrev_b32 v{vLa}, 4, v0")
    A(f"v_and_b32 v{vT}, 31, v0")
    A(f"v_lshrrev_b32 v{vT+1}, 5, v0")
    A(f"v_mul_u32_u24 v{vVa}, 384, v{vT+1}")
    A(f"v_lshl_add_u32 v{vVa}, v{vT}, 4, v{vVa}")
    A("s_waitcnt lgkmcnt(0)")
    A("s_and_b32 s21, s21, 0xffff")
    def srds(br):
        for sg, reg, sz in ((sQS, REG_Q, 0x300000), (sKS, REG_K, 0x300000), (sVS, REG_V, 0x300000), (sOS, REG_O, 2621440)):
            A(f"s_add_u32 s{sg}, s20, {reg + (br << BR_SHIFT)}")
            A(f"s_addc_u32 s{sg+1}, s21, 0")
            A(f"s_mov_b32 s{sg+2}, {sz}")
            A(f"s_mov_b32 s{sg+3}, 0x00020000")
    for r in range(8): A(f"v_mov_b32 v{vQ0+r}, 0")
    for r in range(8): A(f"v_mov_b32 v{vQB+r}, 0")
    for r in range(32): A(f"v_mov_b32 v{vK+r}, 0")
    def gload_kv(st, so, vK=vK, vV=vV):
        A(f"buffer_load_dwordx4 {vr(vK+st*8,4)}, v{vLa}, {sr(sKS,4)}, s{so} offen")
        A(f"s_mov_b64 exec, {sr(sMLO,2)}")
        A(f"buffer_load_dwordx4 {vr(vK+st*8+4,4)}, v{vLa}, {sr(sKS,4)}, s{so} offen offset:1024")
        A(f"s_mov_b64 exec, {sr(sMV,2)}")
        A(f"buffer_load_dwordx4 {vr(vV+st*8,4)}, v{vVa}, {sr(sVS,4)}, s{so} offen")
        A(f"buffer_load_dwordx4 {vr(vV+st*8+4,4)}, v{vVa}, {sr(sVS,4)}, s{so} offen offset:768")
        A("s_mov_b64 exec, -1")
    srds(1)
    A(f"s_and_b32 s{sT0}, s2, 7")
    A(f"s_lshr_b32 s{sT1}, s2, 3")
    A(f"s_lshl_b32 s{sHD}, s{sT0}, 2")
    A(f"s_and_b32 s{sT0}, s{sT1}, 3")
    A(f"s_add_u32 s{sHD}, s{sHD}, s{sT0}")
    A(f"s_lshr_b32 s{sT1}, s{sT1}, 2")
    A(f"s_mul_i32 s{sQT}, s{sT1}, {NWAVE}")
    A(f"s_add_u32 s{sQT}, s{sQT}, s{sWV}")
    A(f"s_lshl_b32 s{sT0}, s{sHD}, 6")
    A(f"s_add_u32 s{sT0}, s{sT0}, s{sQT}")
    A(f"s_mul_i32 s{sUO}, s{sT0}, {TILE_B}")
    A(f"buffer_load_dwordx4 {vr(vQB,4)}, v{vLa}, {sr(sQS,4)}, s{sUO} offen")
    A(f"s_mov_b64 exec, {sr(sMLO,2)}")
    A(f"buffer_load_dwordx2 {vr(vQB+4,2)}, v{vLa}, {sr(sQS,4)}, s{sUO} offen offset:1024")
    A("s_mov_b64 exec, -1")
    A(f"s_cmp_ge_u32 s{sWV}, {NWAVE//2}")
    for j in range(4):
        A(f"s_cselect_b32 s{sDS+j}, s{sVS+j}, s{sKS+j}")
    A(f"s_and_b32 s{sT0}, s{sWV}, {NWAVE//2-1}")
    A(f"s_mul_i32 s{sT0}, s{sT0}, {NCH*1024}")
    A(f"s_mul_i32 s{sDO}, s{sHD}, {HEAD_B}")
    A(f"s_add_u32 s{sDO}, s{sDO}, s{sT0}")
    A(f"s_mul_i32 s{sM0}, s{sWV}, {NCH*1024}")
    A(f"s_mov_b32 s{sBW}, 0")
    def dma():
        A(f"s_add_u32 m0, s{sM0}, s{sBW}")
        A(f"s_add_u32 s{sBW}, s{sBW}, {BUFB}")
        for j in range(NCH):
            A(f"buffer_load_dwordx4 v{vLa}, {sr(sDS,4)}, s{sDO} offen offset:{j*1024} lds")
        A(f"s_cmp_ge_u32 s{sBW}, {NBUF*BUFB}")
        A(f"s_cselect_b32 s{sBW}, 0, s{sBW}")
        A(f"s_add_u32 s{sDO}, s{sDO}, {HALF}")
    dma(); dma()
    if 'noA' not in EXP:
        srds(0)
        A(f"s_mul_i32 s{sT0}, s2, {NWAVE}")
        A(f"s_add_u32 s{sT0}, s{sT0}, s{sWV}")
        A(f"s_lshr_b32 s{sAH2}, s{sT0}, 6")
        A(f"s_and_b32 s{sAQ2}, s{sT0}, 63")
        A(f"s_mul_i32 s{sUO}, s{sT0}, {TILE_B}")
        A(f"s_sub_u32 s{sUP}, s{sUO}, {TILE_B}")
        A(f"s_cmp_eq_u32 s{sAQ2}, 0")
        A(f"s_cselect_b32 s{sUP}, s{sUO}, s{sUP}")
        A(f"s_cselect_b32 s{sAM}, 0, -1")
        for r in range(40): A(f"v_mov_b32 v{vAQ+r}, 0")
        A(f"buffer_load_dwordx4 {vr(vAQ,4)}, v{vLa}, {sr(sQS,4)}, s{sUO} offen")
        A(f"s_mov_b64 exec, {sr(sMLO,2)}")
        A(f"buffer_load_dwordx2 {vr(vAQ+4,2)}, v{vLa}, {sr(sQS,4)}, s{sUO} offen offset:1024")
        A("s_mov_b64 exec, -1")
        gload_kv(0, sUP, vAK, vAV)
        gload_kv(1, sUO, vAK, vAV)
        for j in range(4): A(f"s_mov_b32 s{sOA+j}, s{sOS+j}")
        srds(1)

    def qk(st, sd):
        A(f"v_mfma_f32_32x32x16_bf16 {vr(vS+sd*16,16)}, {vr(vK+st*8,4)}, {vr(vQ0,4)}, 0")
        A(f"v_mfma_f32_32x32x16_bf16 {vr(vS+sd*16,16)}, {vr(vK+st*8+4,4)}, {vr(vQ1,4)}, {vr(vS+sd*16,16)}")
    def rowmax(src, n, dst, t):
        A(f"v_max3_f32 v{dst}, v{src}, v{src+1}, v{src+2}")
        k = 3
        while k + 1 < n:
            A(f"v_max3_f32 v{dst}, v{dst}, v{src+k}, v{src+k+1}")
            k += 2
        if k < n:
            A(f"v_max_f32 v{dst}, v{dst}, v{src+k}")
        A(f"v_mov_b32 v{t}, v{dst}")
        A("s_nop 1")
        A(f"v_permlane32_swap_b32 v{dst}, v{t}")
        A(f"v_max_f32 v{dst}, v{dst}, v{t}")
    def get_l():
        A(f"v_or_b32 v{vT}, 32, v0")
        A(f"v_lshlrev_b32 v{vT}, 2, v{vT}")
        A(f"ds_bpermute_b32 v{vM+1}, v{vT}, v{vO+8}")
    def store_o(shd, sqt, srd):
        A(f"v_rcp_f32 v{vM+1}, v{vM+1}")
        A(f"v_and_b32 v{vT}, 31, v0")
        A(f"v_mul_u32_u24 v{vT}, 1280, v{vT}")
        A(f"v_lshrrev_b32 v{vT+1}, 5, v0")
        A(f"v_lshl_add_u32 v{vT}, v{vT+1}, 3, v{vT}")
        A(f"s_mul_i32 s{sT0}, s{sqt}, {32*1280}")
        A(f"s_mul_i32 s{sT1}, s{shd}, 40")
        A(f"s_add_u32 s{sT0}, s{sT0}, s{sT1}")
        for r in range(12):
            A(f"v_mul_f32 v{vO+r}, v{vO+r}, v{vM+1}")
        for c in range(3):
            A(f"v_cvt_pk_bf16_f32 v{vP+2*c}, v{vO+4*c}, v{vO+4*c+1}")
            A(f"v_cvt_pk_bf16_f32 v{vP+2*c+1}, v{vO+4*c+2}, v{vO+4*c+3}")
        A(f"buffer_store_dwordx2 {vr(vP,2)}, v{vT}, {sr(srd,4)}, s{sT0} offen")
        A(f"buffer_store_dwordx2 {vr(vP+2,2)}, v{vT}, {sr(srd,4)}, s{sT0} offen offset:16")
        A(f"s_mov_b64 exec, {sr(sMLO,2)}")
        A(f"buffer_store_dwordx2 {vr(vP+4,2)}, v{vT}, {sr(srd,4)}, s{sT0} offen offset:32")
        A("s_mov_b64 exec, -1")

    def a_unit():
        A(f"v_and_b32 v{vT}, 31, v0")
        A(f"v_lshrrev_b32 v{vT+1}, 5, v0")
        A(f"v_lshlrev_b32 v{vT+1}, 2, v{vT+1}")
        A(f"v_sub_u32 v{vT}, v{vT}, v{vT+1}")
        A(f"v_add_u32 v{vT}, 18, v{vT}")
        A(f"v_mov_b32 v{vM+4}, 0x5555")
        A(f"v_mov_b32 v{vM+5}, 0")
        A(f"v_lshlrev_b64 {vr(vM+4,2)}, v{vT}, {vr(vM+4,2)}")
        A(f"v_and_b32 v{vM+4}, s{sAM}, v{vM+4}")
        A(f"v_mov_b32 v{vM+6}, 0xff800000")
        for T in range(2):
            A(f"v_mfma_f32_32x32x16_bf16 {vr(vS+T*16,16)}, {vr(vAK+T*8,4)}, {vr(vAQ,4)}, 0")
            A(f"v_mfma_f32_32x32x16_bf16 {vr(vS+T*16,16)}, {vr(vAK+T*8+4,4)}, {vr(vAQ+4,4)}, {vr(vS+T*16,16)}")
        A("s_nop 15")
        live = list(range(8, 32))
        for n, R in enumerate(live):
            T, r = R // 16, R % 16
            bit = 8 * (r // 4) + r % 4
            t = vT + (n & 3)
            A(f"v_bfe_i32 v{t}, v{vM+4+T}, {bit}, 1")
            A(f"v_bfi_b32 v{vS+R}, v{t}, v{vS+R}, v{vM+6}")
        rowmax(vS + 8, 24, vM, vT)
        for R in live: A(f"v_sub_f32 v{vS+R}, v{vS+R}, v{vM}")
        for R in live: A(f"v_exp_f32 v{vS+R}, v{vS+R}")
        A("s_nop 0")
        for j in range(4, 8): A(f"v_cvt_pk_bf16_f32 v{vP+j}, v{vS+2*j}, v{vS+2*j+1}")
        A("s_nop 1")
        A(f"v_mfma_f32_32x32x16_bf16 {vr(vO,16)}, {vr(vAV+4,4)}, {vr(vP+4,4)}, 0")
        for j in range(8): A(f"v_cvt_pk_bf16_f32 v{vS+j}, v{vS+16+2*j}, v{vS+16+2*j+1}")
        A("s_nop 1")
        A(f"v_mfma_f32_32x32x16_bf16 {vr(vO,16)}, {vr(vAV+8,4)}, {vr(vS,4)}, {vr(vO,16)}")
        A(f"v_mfma_f32_32x32x16_bf16 {vr(vO,16)}, {vr(vAV+12,4)}, {vr(vS+4,4)}, {vr(vO,16)}")
        A("s_nop 15")
        get_l()
        A("s_waitcnt lgkmcnt(0)")
        store_o(sAH2, sAQ2, sOA)
    for r in range(16): A(f"v_mov_b32 v{vO+r}, 0")
    A(f"v_mov_b32 v{vKc}, v{vLa}")
    A(f"v_add_u32 v{vKn}, {BUFB}, v{vLa}")
    A(f"v_add_u32 v{vVc}, {HALF}, v{vVa}")
    A(f"s_mov_b32 s{sBN}, {BUFB}")
    A(f"s_waitcnt vmcnt({NCH if 'noA' in EXP else NCH + 10})")
    for r in range(8): A(f"v_mov_b32 v{vQ0+r}, v{vQB+r}")
    A("s_barrier")

    def kread(reg, i, st):
        A(f"ds_read_b128 {vr(vK+st*8,4)}, v{reg} offset:{i*TILE_B}")
        A(f"s_mov_b64 exec, {sr(sMLO,2)}")
        A(f"ds_read_b128 {vr(vK+st*8+4,4)}, v{reg} offset:{i*TILE_B + 1024}")
    def vread(i, st):
        A(f"s_mov_b64 exec, {sr(sMV,2)}")
        A(f"ds_read_b128 {vr(vV+st*8,4)}, v{vVc} offset:{i*TILE_B}")
        A(f"ds_read_b128 {vr(vV+st*8+4,4)}, v{vVc} offset:{i*TILE_B + 768}")
        A("s_mov_b64 exec, -1")

    kread(vKc, 0, 0)
    A("s_mov_b64 exec, -1")
    A("s_waitcnt lgkmcnt(0)")
    qk(0, 0)
    A("s_nop 15")
    rowmax(vS, 16, vM, vT)
    A(f"v_sub_f32 v{vM}, 0, v{vM}")
    A(f"s_mov_b64 exec, {sr(sMLO,2)}")
    A(f"v_cvt_pk_bf16_f32 v{vQ1+2}, v{vM}, 0")
    A("s_mov_b64 exec, -1")
    kread(vKc, 1, 1)
    A("s_mov_b64 exec, -1")
    A("s_nop 1")
    qk(0, 0)
    A(f"s_mov_b32 s{sCNT}, 0")
    lab(f"{P}_loop")
    for i in range(TPS):
        st = i & 1
        if i == TPS - 2 and 'nobar' not in EXP:
            A("s_waitcnt vmcnt(0)")
            A("s_barrier")
            dma()
        if 'nolds' not in EXP:
            if i + 2 < TPS: kread(vKc, i + 2, st)
            else: kread(vKn, i + 2 - TPS, st)
            vread(i, st)
            A("s_waitcnt lgkmcnt(4)")
        S = vS + st * 16
        Sn = vS + (st ^ 1) * 16
        M = (lambda x: None) if 'nomfma' in EXP else A
        E = (lambda r: A(f"v_exp_f32 v{r}, v{r}"))
        CV = (lambda j: A(f"v_cvt_pk_bf16_f32 v{vP+j}, v{S+2*j}, v{S+2*j+1}"))
        M(f"v_mfma_f32_32x32x16_bf16 {vr(Sn,16)}, {vr(vK+(st^1)*8,4)}, {vr(vQ0,4)}, 0")
        for r in range(0, 8): E(S+r)
        M(f"v_mfma_f32_32x32x16_bf16 {vr(Sn,16)}, {vr(vK+(st^1)*8+4,4)}, {vr(vQ1,4)}, {vr(Sn,16)}")
        for j in range(4): CV(j)
        for r in range(8, 16): E(S+r)
        if 'nolds' not in EXP: A("s_waitcnt lgkmcnt(0)")
        M(f"v_mfma_f32_32x32x16_bf16 {vr(vO,16)}, {vr(vV+st*8,4)}, {vr(vP,4)}, {vr(vO,16)}")
        for j in range(4, 8): CV(j)
        if i == TPS - 1:
            A(f"v_mov_b32 v{vKc}, v{vKn}")
            A(f"v_add_u32 v{vVc}, s{sBN}, v{vVa}")
            A(f"v_add_u32 v{vVc}, {HALF}, v{vVc}")
            A(f"s_add_u32 s{sBN}, s{sBN}, {BUFB}")
            A(f"s_cmp_ge_u32 s{sBN}, {NBUF*BUFB}")
            A(f"s_cselect_b32 s{sBN}, 0, s{sBN}")
            A(f"v_add_u32 v{vKn}, s{sBN}, v{vLa}")
        else:
            A("s_nop 1")
        M(f"v_mfma_f32_32x32x16_bf16 {vr(vO,16)}, {vr(vV+st*8+4,4)}, {vr(vP+4,4)}, {vr(vO,16)}")
    A(f"s_add_u32 s{sCNT}, s{sCNT}, 1")
    A(f"s_cmp_lt_u32 s{sCNT}, {NSTG}")
    A(f"s_cbranch_scc1 {P}_loop")
    A("s_nop 15")
    get_l()
    A(f"v_max3_f32 v{vT+1}, abs(v{vO}), abs(v{vO+1}), abs(v{vO+2})")
    for k in range(3, 11, 2):
        A(f"v_max3_f32 v{vT+1}, v{vT+1}, abs(v{vO+k}), abs(v{vO+k+1})")
    A(f"v_max_f32 v{vT+1}, v{vT+1}, abs(v{vO+11})")
    A(f"s_mov_b32 s{sT0}, 0x7b800000")
    A(f"s_mov_b32 s{sT1}, 0x71800000")
    A("s_waitcnt lgkmcnt(0)")
    A(f"v_cmp_ngt_f32 vcc, s{sT0}, v{vT+1}")
    A(f"v_cmp_ngt_f32 {sr(sAH,2)}, s{sT1}, v{vM+1}")
    A(f"s_or_b64 vcc, vcc, {sr(sAH,2)}")
    A(f"s_cbranch_vccnz {P}_fallback")
    lab(f"{P}_store")
    store_o(sHD, sQT, sOS)
    if 'nopf' not in EXP:
        A("s_and_b32 s8, s2, 4")
        A("s_cmp_eq_u32 s8, 0")
        A("s_cselect_b32 s8, s4, s6")
        A("s_cselect_b32 s9, s5, s7")
        A("s_and_b32 s9, s9, 0xffff")
        A("s_mov_b32 s10, 819200")
        A("s_mov_b32 s11, 0x00020000")
        A("s_lshr_b32 s12, s2, 3")
        A("s_mul_i32 s12, s12, 25600")
        A(f"s_lshl_b32 s13, s{sWV}, 10")
        A("s_add_u32 s12, s12, s13")
        for j in range(4):
            A(f"buffer_load_dwordx4 {vr(vPF,4)}, v{vLa}, s[8:11], s12 offen")
            A("s_add_u32 s12, s12, 8192")

    if 'noA' not in EXP:
        A("s_nop 1")
        a_unit()
    if 'stamp' in EXP:
        A("s_memtime s[68:69]")
        A("s_memrealtime s[70:71]")
        A("s_getreg_b32 s72, hwreg(HW_REG_HW_ID)")
        A("s_getreg_b32 s73, hwreg(HW_REG_XCC_ID)")
        A("s_waitcnt lgkmcnt(0)")
        for j, sg in enumerate((60,61,62,63,68,69,70,71,72,73)):
            A(f"v_mov_b32 v{20+j}, s{sg}")
        A(f"s_mul_i32 s74, s2, {NWAVE}")
        A(f"s_add_u32 s74, s74, s{sWV}")
        A("s_lshl_b32 s74, s74, 6")
        A("s_add_u32 s74, s74, 0x3000000")
        A("v_mov_b32 v30, 0")
        A("s_mov_b64 exec, 1")
        A("buffer_store_dwordx4 v[20:23], v30, s[64:67], s74 offen")
        A("buffer_store_dwordx4 v[24:27], v30, s[64:67], s74 offen offset:16")
        A("buffer_store_dwordx2 v[28:29], v30, s[64:67], s74 offen offset:32")
    A("s_endpgm")

    lab(f"{P}_fallback")
    A(f"v_mov_b32 v{vQ1+2}, 0")
    A(f"v_mov_b32 v{vM}, 0xff800000")
    for r in range(16): A(f"v_mov_b32 v{vO+r}, 0")
    A(f"s_mul_i32 s{sDO}, s{sHD}, {HEAD_B}")
    A(f"s_mov_b32 s{sCNT}, 0")
    lab(f"{P}_fbloop")
    gload_kv(0, sDO)
    A("s_waitcnt vmcnt(0)")
    qk(0, 0)
    A("s_nop 15")
    rowmax(vS, 16, vM+2, vT)
    A(f"v_max_f32 v{vM+2}, v{vM+2}, v{vM}")
    A(f"v_sub_f32 v{vM+3}, v{vM}, v{vM+2}")
    A(f"v_exp_f32 v{vM+3}, v{vM+3}")
    A(f"v_mov_b32 v{vM}, v{vM+2}")
    for r in range(16): A(f"v_mul_f32 v{vO+r}, v{vO+r}, v{vM+3}")
    for r in range(16):
        A(f"v_sub_f32 v{vS+r}, v{vS+r}, v{vM}")
        A(f"v_exp_f32 v{vS+r}, v{vS+r}")
    A("s_nop 0")
    for j in range(8): A(f"v_cvt_pk_bf16_f32 v{vP+j}, v{vS+2*j}, v{vS+2*j+1}")
    A("s_nop 1")
    A(f"v_mfma_f32_32x32x16_bf16 {vr(vO,16)}, {vr(vV,4)}, {vr(vP,4)}, {vr(vO,16)}")
    A(f"v_mfma_f32_32x32x16_bf16 {vr(vO,16)}, {vr(vV+4,4)}, {vr(vP+4,4)}, {vr(vO,16)}")
    A(f"s_add_u32 s{sDO}, s{sDO}, {TILE_B}")
    A(f"s_add_u32 s{sCNT}, s{sCNT}, 1")
    A(f"s_cmp_lt_u32 s{sCNT}, 64")
    A("s_nop 15")
    A(f"s_cbranch_scc1 {P}_fbloop")
    get_l()
    A("s_waitcnt lgkmcnt(0)")
    A(f"s_branch {P}_store")
    lab(f"{P}_end")
    A("s_endpgm")
    kernel_desc(name, NV, 80)
    return NBUF * BUFB, NB, NWAVE * 64

def main():
    k1, k2, k3 = "qkv_kernel", "att_kernel", "out_kernel"
    l1, g1, b1 = gemm("qkv", k1)
    l2, g2, b2 = attn(k2)
    l3, g3, b3 = gemm("out", k3)
    hdr = open(f"cdna_kernels/{NAME}.s.ref").read().split("; Override launch")[0]
    out = hdr
    out += f"; @launch kernel={k1} grid=({g1},1,1) block=({b1},1,1) lds={l1}\n"
    out += f"; @launch kernel={k2} grid=({g2},1,1) block=({b2},1,1) lds={l2}\n"
    out += f"; @launch kernel={k3} grid=({g3},1,1) block=({b3},1,1) lds={l3}\n"
    out += '.amdgcn_target "amdgcn-amd-amdhsa--gfx950"\n.text\n'
    out += "\n".join(L) + "\n"
    out += '.section .rodata,"a"\n.p2align 6\n' + "\n".join(DESC) + "\n"
    dst = sys.argv[1] if len(sys.argv) > 1 else f"cdna_kernels/{NAME}.s"
    open(dst, "w").write(out)
main()
```

```python
import math, sys, os
EXP=os.environ.get('EXP','')

NAME = "concat_heads__sliding_local_dilated__mha_block__prompt"
L = []
def A(s):
    if s.startswith("buffer_store") and "stsc1" in EXP: s += " sc1"
    if s.startswith("buffer_store") and "stnt" in EXP: s += " nt"
    L.append("    " + s)
def lab(s): L.append(s + ":")
def C(s): L.append("    ; " + s)

TILE_B = 1536
HEAD_B = 64 * TILE_B
REG_Q, REG_K, REG_V, REG_O = 0, 0x300000, 0x600000, 0x900000
BR_SHIFT = 24
CSCALE = (20 ** -0.5) * math.log2(math.e)
import struct
def f2u(x): return struct.unpack("<I", struct.pack("<f", x))[0]

def vr(b, n): return f"v[{b}:{b+n-1}]"
def sr(b, n): return f"s[{b}:{b+n-1}]"

def kernel_header(name):
    L.append(".p2align 8")
    L.append(f".globl {name}")
    L.append(f".type {name},@function")
    lab(name)

DESC = []
def kernel_desc(name, nv, ns):
    nv4 = (nv + 3) // 4 * 4
    DESC.append(f""".amdhsa_kernel {name}
  .amdhsa_next_free_vgpr {nv}
  .amdhsa_next_free_sgpr {ns}
  .amdhsa_accum_offset {nv4}
  .amdhsa_group_segment_fixed_size 0
  .amdhsa_kernarg_size 72
  .amdhsa_user_sgpr_count 2
  .amdhsa_user_sgpr_kernarg_segment_ptr 1
  .amdhsa_system_sgpr_workgroup_id_x 1
.end_amdhsa_kernel""")

def gemm(kind, name):
    if kind == "qkv":
        BM, BN, WGM, WGN, NBUF = 256, 128, 4, 2, 3
        wstride, nwg = 3840, 240
    else:
        BM, BN, WGM, WGN, NBUF = 64, 160, 1, 5, 5
        wstride, nwg = 1280, 256
    NW = WGM * WGN
    NXF = BM // WGM // 32
    NFF = BN // WGN // 32
    XB = BM * 128
    WB = (BN // 32) * 4096
    STG = XB + WB
    nxi_tot, nwi_tot = BM // 8, (BN // 32) * 4
    NX = -(-nxi_tot // NW)
    if NX % 2: NX += 1
    NWI = -(-nwi_tot // NW)
    ND = NX + NWI
    D = NBUF - 1
    NST = 10
    P = name[:3]
    sBR, sMT, sNT, sWV = 22, 23, 24, 25
    sXS, sWS, sOS = 28, 32, 36
    sX = 40
    sW = sX + NX
    sLX = sW + NWI
    sLW = sLX + NX
    sT0 = sLW + NWI
    sT1, sWM, sWN = sT0 + 1, sT0 + 2, sT0 + 3
    sE = sT0 + 4
    NS = sE + 10
    vXE, vXO, vWs = 1, 2, 3
    vT = 4
    vXrd = 10
    vWrd = vXrd + NBUF * 4
    vXf = (vWrd + NBUF * NFF + 3) // 4 * 4
    vWf = vXf + 2 * NXF * 4
    vAcc = vWf + 2 * NFF * 4
    nacc = NXF * NFF * 16
    vE = vAcc + nacc
    NV = vE + 24

    STAMP = ('gst_'+kind) in EXP
    nst_ = [0]
    def stamp():
        if STAMP:
            A(f"s_memtime s[{80+2*nst_[0]}:{81+2*nst_[0]}]")
            nst_[0] += 1
    def dump():
        if STAMP:
            stamp()
            A("s_waitcnt lgkmcnt(0)")
            A("s_mov_b32 s76, s20")
            A("s_and_b32 s77, s21, 0xffff")
            A("s_mov_b32 s78, 0x10000000")
            A("s_mov_b32 s79, 0x00020000")
            for j in range(16):
                A(f"v_mov_b32 v{20+j}, s{80+j}")
            A(f"s_lshl_b32 s74, s2, 3")
            A(f"s_add_u32 s74, s74, s{sWV}")
            A("s_lshl_b32 s74, s74, 6")
            A("s_add_u32 s74, s74, 0x3000000")
            A("v_mov_b32 v40, 0")
            A("s_mov_b64 exec, 1")
            for j in range(4):
                A(f"buffer_store_dwordx4 v[{20+4*j}:{23+4*j}], v40, s[76:79], s74 offen offset:{16*j}")
            nst_[0] -= 1
    kernel_header(name)
    A(f"s_cmp_ge_u32 s2, {nwg}")
    A(f"s_cbranch_scc1 {P}_end")
    stamp()
    A("s_load_dwordx16 s[4:19], s[0:1], 0")
    A("s_load_dwordx2 s[20:21], s[0:1], 64")
    A("s_and_b32 s26, s2, 7")
    A("s_lshr_b32 s27, s2, 3")
    A(f"s_lshr_b32 s{sBR}, s26, 2")
    A("s_and_b32 s26, s26, 3")
    if kind == "qkv":
        A("s_lshl_b32 s26, s26, 1")
        A(f"s_and_b32 s{sMT}, s27, 1")
        A(f"s_add_u32 s{sMT}, s{sMT}, s26")
        A(f"s_lshr_b32 s{sNT}, s27, 1")
    else:
        A("s_lshl_b32 s26, s26, 3")
        A(f"s_and_b32 s{sMT}, s27, 7")
        A(f"s_add_u32 s{sMT}, s{sMT}, s26")
        A(f"s_lshr_b32 s{sNT}, s27, 3")
    A("v_lshrrev_b32 v1, 6, v0")
    A("v_and_b32 v0, 63, v0")
    A(f"v_readfirstlane_b32 s{sWV}, v1")
    A("s_waitcnt lgkmcnt(0)")
    if WGN == 2:
        A(f"s_lshr_b32 s{sWM}, s{sWV}, 1")
        A(f"s_and_b32 s{sWN}, s{sWV}, 1")
    else:
        A(f"s_mov_b32 s{sWM}, 0")
        A(f"s_mov_b32 s{sWN}, s{sWV}")
    A(f"s_lshl_b32 s{sT0}, s{sBR}, {BR_SHIFT}")
    A(f"s_cmp_eq_u32 s{sBR}, 0")
    if kind == "qkv":
        A(f"s_cselect_b32 s{sXS}, s4, s10")
        A(f"s_cselect_b32 s{sXS+1}, s5, s11")
        A(f"s_cselect_b32 s{sWS}, s6, s12")
        A(f"s_cselect_b32 s{sWS+1}, s7, s13")
        A(f"s_add_u32 s{sOS}, s20, s{sT0}")
        A(f"s_addc_u32 s{sOS+1}, s21, 0")
        A(f"s_mov_b32 s{sXS+2}, 2621440")
        A(f"s_mov_b32 s{sWS+2}, 2457600")
        A(f"s_mov_b32 s{sOS+2}, 0x900000")
    else:
        A(f"s_cselect_b32 s{sWS}, s8, s14")
        A(f"s_cselect_b32 s{sWS+1}, s9, s15")
        A(f"s_add_u32 s{sT0}, s{sT0}, {REG_O}")
        A(f"s_add_u32 s{sXS}, s20, s{sT0}")
        A(f"s_addc_u32 s{sXS+1}, s21, 0")
        A(f"s_mov_b32 s{sOS}, s16")
        A(f"s_mov_b32 s{sOS+1}, s17")
        A(f"s_mov_b32 s{sXS+2}, 2621440")
        A(f"s_mov_b32 s{sWS+2}, 819200")
        A(f"s_mov_b32 s{sOS+2}, 5242880")
    for s in (sXS, sWS, sOS):
        A(f"s_and_b32 s{s+1}, s{s+1}, 0xffff")
        A(f"s_mov_b32 s{s+3}, 0x00020000")
    A(f"v_lshrrev_b32 v{vT}, 3, v0")
    A(f"v_mul_u32_u24 v{vXE}, 1280, v{vT}")
    A(f"v_and_b32 v{vT}, 7, v0")
    A(f"v_lshrrev_b32 v{vT+1}, 4, v0")
    A(f"v_xor_b32 v{vT}, v{vT}, v{vT+1}")
    A(f"v_lshl_add_u32 v{vXE}, v{vT}, 4, v{vXE}")
    A(f"v_xor_b32 v{vXO}, 64, v{vXE}")
    A(f"v_lshrrev_b32 v{vT}, 2, v0")
    A(f"v_mul_u32_u24 v{vWs}, {wstride}, v{vT}")
    A(f"v_and_b32 v{vT}, 3, v0")
    A(f"v_lshl_add_u32 v{vWs}, v{vT}, 4, v{vWs}")
    for j in range(NX):
        A(f"s_mul_i32 s{sT0}, s{sWV}, {NX}")
        A(f"s_add_u32 s{sT0}, s{sT0}, {j}")
        if NX * NW != nxi_tot:
            assert nxi_tot & (nxi_tot - 1) == 0
            A(f"s_and_b32 s{sT0}, s{sT0}, {nxi_tot-1}")
        A(f"s_lshl_b32 s{sLX+j}, s{sT0}, 10")
        A(f"s_mul_i32 s{sT1}, s{sMT}, {BM//8}")
        A(f"s_add_u32 s{sT0}, s{sT0}, s{sT1}")
        A(f"s_mul_i32 s{sX+j}, s{sT0}, {8*1280}")
    assert NWI * NW == nwi_tot
    for j in range(NWI):
        A(f"s_mul_i32 s{sT0}, s{sWV}, {NWI}")
        A(f"s_add_u32 s{sT0}, s{sT0}, {j}")
        A(f"s_lshl_b32 s{sLW+j}, s{sT0}, 10")
        A(f"s_add_u32 s{sLW+j}, s{sLW+j}, {XB}")
        A(f"s_and_b32 s{sT1}, s{sT0}, 3")
        A(f"s_mul_i32 s{sT1}, s{sT1}, {16*wstride}")
        A(f"s_lshr_b32 s{sT0}, s{sT0}, 2")
        A(f"s_lshl_b32 s{sT0}, s{sT0}, 6")
        A(f"s_add_u32 s{sT1}, s{sT1}, s{sT0}")
        A(f"s_mul_i32 s{sT0}, s{sNT}, {BN*2}")
        A(f"s_add_u32 s{sW+j}, s{sT1}, s{sT0}")

    ROT = 'norot' not in EXP
    sK, sDX, sDW = sE + 6, sE + 7, sE + 8
    if ROT:
        A(f"s_add_u32 s{sK}, s{sNT}, s{sMT}")
        for _ in range(4):
            A(f"s_cmp_ge_u32 s{sK}, 10")
            A(f"s_cselect_b32 s{sT0}, 10, 0")
            A(f"s_sub_u32 s{sK}, s{sK}, s{sT0}")
        A(f"s_lshl_b32 s{sT0}, s{sK}, 7")
        A(f"s_mul_i32 s{sT1}, s{sK}, {64*wstride}")
        for j in range(NX): A(f"s_add_u32 s{sX+j}, s{sX+j}, s{sT0}")
        for j in range(NWI): A(f"s_add_u32 s{sW+j}, s{sW+j}, s{sT1}")
    def issue_groups(stage):
        buf = stage % NBUF
        G = []
        if 'gnodma' in EXP and stage >= 2: return []
        g = []
        if ROT:
            g += [f"s_add_u32 s{sK}, s{sK}, 1", f"s_cmp_eq_u32 s{sK}, 10",
                  f"s_cselect_b32 s{sDX}, {(-1280) & 0xffffffff}, 0",
                  f"s_cselect_b32 s{sDW}, {(-10*64*wstride) & 0xffffffff}, 0",
                  f"s_cselect_b32 s{sK}, 0, s{sK}",
                  f"s_add_u32 s{sDX}, s{sDX}, 128", f"s_add_u32 s{sDW}, s{sDW}, {64*wstride}"]
        for j in range(NX):
            g += [f"s_add_u32 m0, s{sLX+j}, {buf*STG}", "s_nop 0",
                  f"buffer_load_dwordx4 v{vXE if j%2==0 else vXO}, {sr(sXS,4)}, s{sX+j} offen lds",
                  f"s_add_u32 s{sX+j}, s{sX+j}, " + (f"s{sDX}" if ROT else "128")]
            G.append(g); g = []
        for j in range(NWI):
            g += [f"s_add_u32 m0, s{sLW+j}, {buf*STG}", "s_nop 0",
                  f"buffer_load_dwordx4 v{vWs}, {sr(sWS,4)}, s{sW+j} offen lds",
                  f"s_add_u32 s{sW+j}, s{sW+j}, " + (f"s{sDW}" if ROT else f"{64*wstride}")]
            G.append(g); g = []
        return G
    def issue(stage):
        for g in issue_groups(stage):
            for x in g: A(x)

    issue(0)
    A(f"v_and_b32 v{vT}, 31, v0")
    A(f"s_mul_i32 s{sT0}, s{sWM}, {BM//WGM}")
    A(f"v_add_u32 v{vT}, s{sT0}, v{vT}")
    A(f"v_lshlrev_b32 v{vT}, 7, v{vT}")
    A(f"v_bfe_u32 v{vT+1}, v0, 1, 3")
    A(f"v_lshrrev_b32 v{vT+2}, 5, v0")
    for ks in range(4):
        A(f"v_add_u32 v{vT+3}, {2*ks}, v{vT+2}")
        A(f"v_xor_b32 v{vT+3}, v{vT+3}, v{vT+1}")
        A(f"v_lshl_add_u32 v{vXrd+ks}, v{vT+3}, 4, v{vT}")
        for b in range(1, NBUF):
            A(f"v_add_u32 v{vXrd+b*4+ks}, {b*STG}, v{vXrd+ks}")
    A(f"v_bfe_u32 v{vT}, v0, 2, 2")
    A(f"v_lshl_add_u32 v{vT+1}, v{vT+2}, 3, v{vT}")
    A(f"v_lshlrev_b32 v{vT+1}, 6, v{vT+1}")
    A(f"v_bfe_u32 v{vT+3}, v0, 4, 1")
    A(f"v_lshl_add_u32 v{vT+1}, v{vT+3}, 5, v{vT+1}")
    A(f"v_and_b32 v{vT+3}, 3, v0")
    A(f"v_lshl_add_u32 v{vT+1}, v{vT+3}, 3, v{vT+1}")
    A(f"s_mul_i32 s{sT0}, s{sWN}, {NFF*4096}")
    A(f"s_add_u32 s{sT0}, s{sT0}, {XB}")
    for b in range(NBUF):
        for fi in range(NFF):
            A(f"s_add_u32 s{sT1}, s{sT0}, {b*STG + fi*4096}")
            A(f"v_add_u32 v{vWrd+b*NFF+fi}, s{sT1}, v{vT+1}")
    for r in range(nacc):
        A(f"v_mov_b32 v{vAcc+r}, 0")
    for st in range(1, D): issue(st)

    def acc(xi, fi): return vAcc + (xi * NFF + fi) * 16
    def reads(buf, ks, st):
        if 'gnolds' in EXP: return
        for xi in range(NXF):
            A(f"ds_read_b128 {vr(vXf+(st*NXF+xi)*4,4)}, v{vXrd+buf*4+ks} offset:{xi*4096}")
        for fi in range(NFF):
            for i in range(2):
                A(f"ds_read_b64_tr_b16 {vr(vWf+(st*NFF+fi)*4+2*i,2)}, v{vWrd+buf*NFF+fi} offset:{ks*1024 + i*256}")
    nrd = NXF + 2 * NFF
    def compute(buf, vorient, G):
        G = list(G)
        nm = NXF * NFF * 4
        slots = {}
        for gi in range(len(G)):
            slots.setdefault((gi * nm) // len(G), []).append(G[gi])
        reads(buf, 0, 0)
        mi = 0
        for ks in range(4):
            st = ks & 1
            if ks < 3:
                reads(buf, ks + 1, st ^ 1)
                A(f"s_waitcnt lgkmcnt({nrd})")
            else:
                A("s_waitcnt lgkmcnt(0)")
            for xi in range(NXF):
                for fi in range(NFF):
                    x = vr(vXf + (st * NXF + xi) * 4, 4)
                    w = vr(vWf + (st * NFF + fi) * 4, 4)
                    a = vr(acc(xi, fi), 16)
                    if 'gnomfma' in EXP: pass
                    elif vorient:
                        A(f"v_mfma_f32_32x32x16_bf16 {a}, {x}, {w}, {a}")
                    else:
                        A(f"v_mfma_f32_32x32x16_bf16 {a}, {w}, {x}, {a}")
                    for g in slots.get(mi, []):
                        for xx in g: A(xx)
                    mi += 1

    def mainloop(vorient):
        for s in range(NST):
            A(f"s_waitcnt vmcnt({ND*min(D-1, NST-1-s)})")
            A("s_barrier")
            if s in (0, 1, 5):
                if vorient and s == 0: nst_[0] = 1
                stamp()
            compute(s % NBUF, vorient, issue_groups(s + D) if s + D < NST else [])
        stamp()
        A("s_nop 15")

    if kind == "out":
        mainloop(False)
        A(f"v_and_b32 v{vT}, 31, v0")
        A(f"v_mul_u32_u24 v{vT}, 2560, v{vT}")
        A(f"v_lshrrev_b32 v{vT+1}, 5, v0")
        A(f"v_lshl_add_u32 v{vT}, v{vT+1}, 3, v{vT}")
        A(f"s_mul_i32 s{sT0}, s{sMT}, {64*2560}")
        A(f"s_mul_i32 s{sT1}, s{sBR}, 1280")
        A(f"s_add_u32 s{sT0}, s{sT0}, s{sT1}")
        A(f"s_mul_i32 s{sT1}, s{sNT}, {BN*2}")
        A(f"s_add_u32 s{sT0}, s{sT0}, s{sT1}")
        A(f"s_lshl_b32 s{sT1}, s{sWN}, 6")
        A(f"s_add_u32 s{sT0}, s{sT0}, s{sT1}")
        A(f"s_add_u32 s{sT1}, s{sT0}, {32*2560}")
        for xi in range(2):
            for g in range(4):
                a = acc(xi, 0) + 4 * g
                e = vE + ((xi * 4 + g) % 4) * 2
                A(f"v_cvt_pk_bf16_f32 v{e}, v{a}, v{a+1}")
                A(f"v_cvt_pk_bf16_f32 v{e+1}, v{a+2}, v{a+3}")
                A(f"buffer_store_dwordx2 {vr(e,2)}, v{vT}, {sr(sOS,4)}, s{sT0+xi} offen offset:{g*16}")
    else:
        A(f"s_cmp_ge_u32 s{sNT}, 10")
        A(f"s_cbranch_scc1 {P}_vpath")
        mainloop(False)
        A(f"s_cmp_ge_u32 s{sNT}, 5")
        A(f"s_cselect_b32 s{sT0}, 5, 0")
        A(f"s_cselect_b32 s{sE}, {REG_K}, 0")
        A(f"s_cselect_b32 s{sE+1}, 1.0, {hex(f2u(CSCALE))}")
        A(f"s_sub_u32 s{sT0}, s{sNT}, s{sT0}")
        A(f"s_lshl_b32 s{sT0}, s{sT0}, 7")
        A(f"s_lshl_b32 s{sT1}, s{sWN}, 6")
        A(f"s_add_u32 s{sT0}, s{sT0}, s{sT1}")
        A(f"s_mul_i32 s{sT1}, s{sMT}, {WGM}")
        A(f"s_add_u32 s{sT1}, s{sT1}, s{sWM}")
        A(f"s_mul_i32 s{sT1}, s{sT1}, {2*TILE_B}")
        A(f"s_add_u32 s{sE}, s{sE}, s{sT1}")
        for r in range(nacc):
            A(f"v_mul_f32 v{vAcc+r}, s{sE+1}, v{vAcc+r}")
        A(f"v_lshrrev_b32 v{vT}, 5, v0")
        A(f"v_lshl_add_u32 v{vT}, v{vT}, 2, s{sT0}")
        A(f"v_and_b32 v{vT+1}, 31, v0")
        A(f"v_lshlrev_b32 v{vT+1}, 4, v{vT+1}")
        A(f"v_mov_b32 v{vE+8}, 0x3f80")
        A(f"v_mov_b32 v{vE+9}, 0")
        A(f"s_mov_b32 s{sE+2}, {HEAD_B}")
        for fi in range(2):
            for g in range(4):
                A(f"v_add_u32 v{vT+2}, {fi*32+g*8}, v{vT}")
                A(f"v_mul_u32_u24 v{vT+3}, 3277, v{vT+2}")
                A(f"v_lshrrev_b32 v{vT+3}, 16, v{vT+3}")
                A(f"v_mul_u32_u24 v{vT+4}, 20, v{vT+3}")
                A(f"v_sub_u32 v{vT+2}, v{vT+2}, v{vT+4}")
                A(f"v_mul_lo_u32 v{vT+3}, v{vT+3}, s{sE+2}")
                A(f"v_add_u32 v{vT+3}, v{vT+3}, v{vT+1}")
                A(f"v_lshrrev_b32 v{vT+4}, 3, v{vT+2}")
                A(f"v_lshl_add_u32 v{vT+3}, v{vT+4}, 9, v{vT+3}")
                A(f"v_and_b32 v{vT+4}, 7, v{vT+2}")
                A(f"v_lshl_add_u32 v{vT+3}, v{vT+4}, 1, v{vT+3}")
                A(f"v_cmp_eq_u32 vcc, 16, v{vT+2}")
                for xi in range(2):
                    a = acc(xi, fi) + 4 * g
                    e = vE + xi * 2
                    A(f"v_cvt_pk_bf16_f32 v{e}, v{a}, v{a+1}")
                    A(f"v_cvt_pk_bf16_f32 v{e+1}, v{a+2}, v{a+3}")
                    A(f"buffer_store_dwordx2 {vr(e,2)}, v{vT+3}, {sr(sOS,4)}, s{sE} offen offset:{xi*TILE_B}")
                A(f"s_and_saveexec_b64 {sr(sE+4,2)}, vcc")
                for xi in range(2):
                    A(f"buffer_store_dwordx2 {vr(vE+8,2)}, v{vT+3}, {sr(sOS,4)}, s{sE} offen offset:{xi*TILE_B+8}")
                A(f"s_mov_b64 exec, {sr(sE+4,2)}")
        dump()
        A("s_endpgm")
        lab(f"{P}_vpath")
        mainloop(True)
        A(f"s_sub_u32 s{sT0}, s{sNT}, 10")
        A(f"s_lshl_b32 s{sT0}, s{sT0}, 7")
        A(f"s_lshl_b32 s{sT1}, s{sWN}, 6")
        A(f"s_add_u32 s{sT0}, s{sT0}, s{sT1}")
        A(f"s_mul_i32 s{sT1}, s{sMT}, {WGM}")
        A(f"s_add_u32 s{sT1}, s{sT1}, s{sWM}")
        A(f"s_mul_i32 s{sT1}, s{sT1}, {2*TILE_B}")
        A(f"s_add_u32 s{sE}, s{sT1}, {REG_V}")
        A(f"s_mov_b32 s{sE+2}, {HEAD_B}")
        A(f"v_and_b32 v{vT}, 31, v0")
        A(f"v_add_u32 v{vT}, s{sT0}, v{vT}")
        A(f"v_lshrrev_b32 v{vT+1}, 5, v0")
        A(f"v_mul_u32_u24 v{vT+1}, 384, v{vT+1}")
        for fi in range(2):
            A(f"v_add_u32 v{vT+2}, {fi*32}, v{vT}")
            A(f"v_mul_u32_u24 v{vT+3}, 3277, v{vT+2}")
            A(f"v_lshrrev_b32 v{vT+3}, 16, v{vT+3}")
            A(f"v_mul_u32_u24 v{vT+4}, 20, v{vT+3}")
            A(f"v_sub_u32 v{vT+2}, v{vT+2}, v{vT+4}")
            A(f"v_mul_lo_u32 v{vT+3}, v{vT+3}, s{sE+2}")
            A(f"v_add_u32 v{vT+3}, v{vT+3}, v{vT+1}")
            A(f"v_lshl_add_u32 v{vT+3}, v{vT+2}, 4, v{vT+3}")
            A(f"v_cmp_eq_u32 vcc, 16, v{vT+2}")
            A(f"v_mov_b32 v{vT+5}, 0x3f803f80")
            A("s_nop 1")
            A(f"v_cndmask_b32 v{vE+16}, 0, v{vT+5}, vcc")
            A(f"v_mov_b32 v{vE+17}, v{vE+16}")
            A(f"v_mov_b32 v{vE+18}, v{vE+16}")
            A(f"v_mov_b32 v{vE+19}, v{vE+16}")
            A(f"v_cmp_le_u32 vcc, 16, v{vT+2}")
            for xi in range(2):
                for m in range(2):
                    a = acc(xi, fi) + 8 * m
                    e = vE + (xi * 2 + m) * 4
                    for j in range(4):
                        A(f"v_cvt_pk_bf16_f32 v{e+j}, v{a+2*j}, v{a+2*j+1}")
                    A(f"buffer_store_dwordx4 {vr(e,4)}, v{vT+3}, {sr(sOS,4)}, s{sE} offen offset:{xi*TILE_B+m*768}")
            A(f"s_and_saveexec_b64 {sr(sE+4,2)}, vcc")
            for xi in range(2):
                for m in range(2):
                    A(f"buffer_store_dwordx4 {vr(vE+16,4)}, v{vT+3}, {sr(sOS,4)}, s{sE} offen offset:{xi*TILE_B+m*768+64}")
            A(f"s_mov_b64 exec, {sr(sE+4,2)}")
    dump()
    lab(f"{P}_end")
    A("s_endpgm")
    assert (sE + 4) % 2 == 0
    kernel_desc(name, NV, 100 if STAMP else NS)
    return STG * NBUF, nwg, NW * 64

def attn(name):
    NWAVE = 8 if 'w4' not in EXP else 4
    TPS = 8 if NWAVE == 8 else 4
    NBUF = 3
    NSTG = 64 // TPS
    NB = 2048 // NWAVE
    HALF = TPS * TILE_B
    BUFB = 2 * HALF
    NCH = BUFB // 1024 // NWAVE
    assert NCH * NWAVE * 1024 == BUFB
    P = "att"
    sHD, sQT, sWV, sT0, sT1, sCNT = 22, 23, 25, 26, 27, 24
    sQS, sKS, sVS, sOS, sDS = 28, 32, 36, 40, 44
    sDO, sM0 = 48, 49
    sMLO, sMV = 50, 52
    sUO, sUP, sBW, sBN = 54, 55, 56, 57
    sAH, sAQ = 58, 59
    sAM, sOA = 19, 76
    sAH2, sAQ2 = 17, 18
    vLa, vVa = 1, 2
    vT = 3
    vKc, vKn = 10, 11
    vQ0, vQ1 = 12, 16
    vK = 20
    vV = 36
    vS = 52
    vP = 84
    vO = 92
    vM = 108
    vQB = 116
    vVc = 124
    vAQ, vAK, vAV = 128, 136, 152
    vPF = 168
    NV = 172

    kernel_header(name)
    A(f"s_cmp_ge_u32 s2, {NB}")
    A(f"s_cbranch_scc1 {P}_end")
    A("s_load_dwordx2 s[20:21], s[0:1], 64")
    A("s_load_dwordx2 s[4:5], s[0:1], 16")
    A("s_load_dwordx2 s[6:7], s[0:1], 40")
    if 'stamp' in EXP:
        A("s_memtime s[60:61]")
        A("s_memrealtime s[62:63]")
        A("s_waitcnt lgkmcnt(0)")
        A("s_mov_b32 s64, s20")
        A("s_and_b32 s65, s21, 0xffff")
        A("s_mov_b32 s66, 0x10000000")
        A("s_mov_b32 s67, 0x00020000")
    A("v_lshrrev_b32 v1, 6, v0")
    A("v_and_b32 v0, 63, v0")
    A(f"v_readfirstlane_b32 s{sWV}, v1")
    A(f"s_mov_b32 s{sMLO}, -1")
    A(f"s_mov_b32 s{sMLO+1}, 0")
    A(f"s_mov_b32 s{sMV}, 0x00ffffff")
    A(f"s_mov_b32 s{sMV+1}, 0x00ffffff")
    A(f"v_lshlrev_b32 v{vLa}, 4, v0")
    A(f"v_and_b32 v{vT}, 31, v0")
    A(f"v_lshrrev_b32 v{vT+1}, 5, v0")
    A(f"v_mul_u32_u24 v{vVa}, 384, v{vT+1}")
    A(f"v_lshl_add_u32 v{vVa}, v{vT}, 4, v{vVa}")
    A("s_waitcnt lgkmcnt(0)")
    A("s_and_b32 s21, s21, 0xffff")
    def srds(br):
        for sg, reg, sz in ((sQS, REG_Q, 0x300000), (sKS, REG_K, 0x300000), (sVS, REG_V, 0x300000), (sOS, REG_O, 2621440)):
            A(f"s_add_u32 s{sg}, s20, {reg + (br << BR_SHIFT)}")
            A(f"s_addc_u32 s{sg+1}, s21, 0")
            A(f"s_mov_b32 s{sg+2}, {sz}")
            A(f"s_mov_b32 s{sg+3}, 0x00020000")
    for r in range(8): A(f"v_mov_b32 v{vQ0+r}, 0")
    for r in range(8): A(f"v_mov_b32 v{vQB+r}, 0")
    for r in range(32): A(f"v_mov_b32 v{vK+r}, 0")
    def gload_kv(st, so, vK=vK, vV=vV):
        A(f"buffer_load_dwordx4 {vr(vK+st*8,4)}, v{vLa}, {sr(sKS,4)}, s{so} offen")
        A(f"s_mov_b64 exec, {sr(sMLO,2)}")
        A(f"buffer_load_dwordx4 {vr(vK+st*8+4,4)}, v{vLa}, {sr(sKS,4)}, s{so} offen offset:1024")
        A(f"s_mov_b64 exec, {sr(sMV,2)}")
        A(f"buffer_load_dwordx4 {vr(vV+st*8,4)}, v{vVa}, {sr(sVS,4)}, s{so} offen")
        A(f"buffer_load_dwordx4 {vr(vV+st*8+4,4)}, v{vVa}, {sr(sVS,4)}, s{so} offen offset:768")
        A("s_mov_b64 exec, -1")
    srds(1)
    A(f"s_and_b32 s{sT0}, s2, 7")
    A(f"s_lshr_b32 s{sT1}, s2, 3")
    A(f"s_lshl_b32 s{sHD}, s{sT0}, 2")
    A(f"s_and_b32 s{sT0}, s{sT1}, 3")
    A(f"s_add_u32 s{sHD}, s{sHD}, s{sT0}")
    A(f"s_lshr_b32 s{sT1}, s{sT1}, 2")
    A(f"s_mul_i32 s{sQT}, s{sT1}, {NWAVE}")
    A(f"s_add_u32 s{sQT}, s{sQT}, s{sWV}")
    A(f"s_lshl_b32 s{sT0}, s{sHD}, 6")
    A(f"s_add_u32 s{sT0}, s{sT0}, s{sQT}")
    A(f"s_mul_i32 s{sUO}, s{sT0}, {TILE_B}")
    A(f"buffer_load_dwordx4 {vr(vQB,4)}, v{vLa}, {sr(sQS,4)}, s{sUO} offen")
    A(f"s_mov_b64 exec, {sr(sMLO,2)}")
    A(f"buffer_load_dwordx2 {vr(vQB+4,2)}, v{vLa}, {sr(sQS,4)}, s{sUO} offen offset:1024")
    A("s_mov_b64 exec, -1")
    A(f"s_cmp_ge_u32 s{sWV}, {NWAVE//2}")
    for j in range(4):
        A(f"s_cselect_b32 s{sDS+j}, s{sVS+j}, s{sKS+j}")
    A(f"s_and_b32 s{sT0}, s{sWV}, {NWAVE//2-1}")
    A(f"s_mul_i32 s{sT0}, s{sT0}, {NCH*1024}")
    A(f"s_mul_i32 s{sDO}, s{sHD}, {HEAD_B}")
    A(f"s_add_u32 s{sDO}, s{sDO}, s{sT0}")
    A(f"s_mul_i32 s{sM0}, s{sWV}, {NCH*1024}")
    A(f"s_mov_b32 s{sBW}, 0")
    def dma():
        A(f"s_add_u32 m0, s{sM0}, s{sBW}")
        A(f"s_add_u32 s{sBW}, s{sBW}, {BUFB}")
        for j in range(NCH):
            A(f"buffer_load_dwordx4 v{vLa}, {sr(sDS,4)}, s{sDO} offen offset:{j*1024} lds")
        A(f"s_cmp_ge_u32 s{sBW}, {NBUF*BUFB}")
        A(f"s_cselect_b32 s{sBW}, 0, s{sBW}")
        A(f"s_add_u32 s{sDO}, s{sDO}, {HALF}")
    dma(); dma()
    if 'noA' not in EXP:
        srds(0)
        A(f"s_mul_i32 s{sT0}, s2, {NWAVE}")
        A(f"s_add_u32 s{sT0}, s{sT0}, s{sWV}")
        A(f"s_lshr_b32 s{sAH2}, s{sT0}, 6")
        A(f"s_and_b32 s{sAQ2}, s{sT0}, 63")
        A(f"s_mul_i32 s{sUO}, s{sT0}, {TILE_B}")
        A(f"s_sub_u32 s{sUP}, s{sUO}, {TILE_B}")
        A(f"s_cmp_eq_u32 s{sAQ2}, 0")
        A(f"s_cselect_b32 s{sUP}, s{sUO}, s{sUP}")
        A(f"s_cselect_b32 s{sAM}, 0, -1")
        for r in range(40): A(f"v_mov_b32 v{vAQ+r}, 0")
        A(f"buffer_load_dwordx4 {vr(vAQ,4)}, v{vLa}, {sr(sQS,4)}, s{sUO} offen")
        A(f"s_mov_b64 exec, {sr(sMLO,2)}")
        A(f"buffer_load_dwordx2 {vr(vAQ+4,2)}, v{vLa}, {sr(sQS,4)}, s{sUO} offen offset:1024")
        A("s_mov_b64 exec, -1")
        gload_kv(0, sUP, vAK, vAV)
        gload_kv(1, sUO, vAK, vAV)
        for j in range(4): A(f"s_mov_b32 s{sOA+j}, s{sOS+j}")
        srds(1)

    def qk(st, sd):
        A(f"v_mfma_f32_32x32x16_bf16 {vr(vS+sd*16,16)}, {vr(vK+st*8,4)}, {vr(vQ0,4)}, 0")
        A(f"v_mfma_f32_32x32x16_bf16 {vr(vS+sd*16,16)}, {vr(vK+st*8+4,4)}, {vr(vQ1,4)}, {vr(vS+sd*16,16)}")
    def rowmax(src, n, dst, t):
        A(f"v_max3_f32 v{dst}, v{src}, v{src+1}, v{src+2}")
        k = 3
        while k + 1 < n:
            A(f"v_max3_f32 v{dst}, v{dst}, v{src+k}, v{src+k+1}")
            k += 2
        if k < n:
            A(f"v_max_f32 v{dst}, v{dst}, v{src+k}")
        A(f"v_mov_b32 v{t}, v{dst}")
        A("s_nop 1")
        A(f"v_permlane32_swap_b32 v{dst}, v{t}")
        A(f"v_max_f32 v{dst}, v{dst}, v{t}")
    def get_l():
        A(f"v_or_b32 v{vT}, 32, v0")
        A(f"v_lshlrev_b32 v{vT}, 2, v{vT}")
        A(f"ds_bpermute_b32 v{vM+1}, v{vT}, v{vO+8}")
    def store_o(shd, sqt, srd):
        A(f"v_rcp_f32 v{vM+1}, v{vM+1}")
        A(f"v_and_b32 v{vT}, 31, v0")
        A(f"v_mul_u32_u24 v{vT}, 1280, v{vT}")
        A(f"v_lshrrev_b32 v{vT+1}, 5, v0")
        A(f"v_lshl_add_u32 v{vT}, v{vT+1}, 3, v{vT}")
        A(f"s_mul_i32 s{sT0}, s{sqt}, {32*1280}")
        A(f"s_mul_i32 s{sT1}, s{shd}, 40")
        A(f"s_add_u32 s{sT0}, s{sT0}, s{sT1}")
        for r in range(12):
            A(f"v_mul_f32 v{vO+r}, v{vO+r}, v{vM+1}")
        for c in range(3):
            A(f"v_cvt_pk_bf16_f32 v{vP+2*c}, v{vO+4*c}, v{vO+4*c+1}")
            A(f"v_cvt_pk_bf16_f32 v{vP+2*c+1}, v{vO+4*c+2}, v{vO+4*c+3}")
        A(f"buffer_store_dwordx2 {vr(vP,2)}, v{vT}, {sr(srd,4)}, s{sT0} offen")
        A(f"buffer_store_dwordx2 {vr(vP+2,2)}, v{vT}, {sr(srd,4)}, s{sT0} offen offset:16")
        A(f"s_mov_b64 exec, {sr(sMLO,2)}")
        A(f"buffer_store_dwordx2 {vr(vP+4,2)}, v{vT}, {sr(srd,4)}, s{sT0} offen offset:32")
        A("s_mov_b64 exec, -1")

    def a_unit():
        A(f"v_and_b32 v{vT}, 31, v0")
        A(f"v_lshrrev_b32 v{vT+1}, 5, v0")
        A(f"v_lshlrev_b32 v{vT+1}, 2, v{vT+1}")
        A(f"v_sub_u32 v{vT}, v{vT}, v{vT+1}")
        A(f"v_add_u32 v{vT}, 18, v{vT}")
        A(f"v_mov_b32 v{vM+4}, 0x5555")
        A(f"v_mov_b32 v{vM+5}, 0")
        A(f"v_lshlrev_b64 {vr(vM+4,2)}, v{vT}, {vr(vM+4,2)}")
        A(f"v_and_b32 v{vM+4}, s{sAM}, v{vM+4}")
        A(f"v_mov_b32 v{vM+6}, 0xff800000")
        for T in range(2):
            A(f"v_mfma_f32_32x32x16_bf16 {vr(vS+T*16,16)}, {vr(vAK+T*8,4)}, {vr(vAQ,4)}, 0")
            A(f"v_mfma_f32_32x32x16_bf16 {vr(vS+T*16,16)}, {vr(vAK+T*8+4,4)}, {vr(vAQ+4,4)}, {vr(vS+T*16,16)}")
        A("s_nop 15")
        live = list(range(8, 32))
        for n, R in enumerate(live):
            T, r = R // 16, R % 16
            bit = 8 * (r // 4) + r % 4
            t = vT + (n & 3)
            A(f"v_bfe_i32 v{t}, v{vM+4+T}, {bit}, 1")
            A(f"v_bfi_b32 v{vS+R}, v{t}, v{vS+R}, v{vM+6}")
        rowmax(vS + 8, 24, vM, vT)
        for R in live: A(f"v_sub_f32 v{vS+R}, v{vS+R}, v{vM}")
        for R in live: A(f"v_exp_f32 v{vS+R}, v{vS+R}")
        A("s_nop 0")
        for j in range(4, 8): A(f"v_cvt_pk_bf16_f32 v{vP+j}, v{vS+2*j}, v{vS+2*j+1}")
        A("s_nop 1")
        A(f"v_mfma_f32_32x32x16_bf16 {vr(vO,16)}, {vr(vAV+4,4)}, {vr(vP+4,4)}, 0")
        for j in range(8): A(f"v_cvt_pk_bf16_f32 v{vS+j}, v{vS+16+2*j}, v{vS+16+2*j+1}")
        A("s_nop 1")
        A(f"v_mfma_f32_32x32x16_bf16 {vr(vO,16)}, {vr(vAV+8,4)}, {vr(vS,4)}, {vr(vO,16)}")
        A(f"v_mfma_f32_32x32x16_bf16 {vr(vO,16)}, {vr(vAV+12,4)}, {vr(vS+4,4)}, {vr(vO,16)}")
        A("s_nop 15")
        get_l()
        A("s_waitcnt lgkmcnt(0)")
        store_o(sAH2, sAQ2, sOA)
    for r in range(16): A(f"v_mov_b32 v{vO+r}, 0")
    A(f"v_mov_b32 v{vKc}, v{vLa}")
    A(f"v_add_u32 v{vKn}, {BUFB}, v{vLa}")
    A(f"v_add_u32 v{vVc}, {HALF}, v{vVa}")
    A(f"s_mov_b32 s{sBN}, {BUFB}")
    A(f"s_waitcnt vmcnt({NCH if 'noA' in EXP else NCH + 10})")
    for r in range(8): A(f"v_mov_b32 v{vQ0+r}, v{vQB+r}")
    A("s_barrier")

    def kread(reg, i, st):
        A(f"ds_read_b128 {vr(vK+st*8,4)}, v{reg} offset:{i*TILE_B}")
        A(f"s_mov_b64 exec, {sr(sMLO,2)}")
        A(f"ds_read_b128 {vr(vK+st*8+4,4)}, v{reg} offset:{i*TILE_B + 1024}")
    def vread(i, st):
        A(f"s_mov_b64 exec, {sr(sMV,2)}")
        A(f"ds_read_b128 {vr(vV+st*8,4)}, v{vVc} offset:{i*TILE_B}")
        A(f"ds_read_b128 {vr(vV+st*8+4,4)}, v{vVc} offset:{i*TILE_B + 768}")
        A("s_mov_b64 exec, -1")

    kread(vKc, 0, 0)
    A("s_mov_b64 exec, -1")
    A("s_waitcnt lgkmcnt(0)")
    qk(0, 0)
    A("s_nop 15")
    rowmax(vS, 16, vM, vT)
    A(f"v_sub_f32 v{vM}, 0, v{vM}")
    A(f"s_mov_b64 exec, {sr(sMLO,2)}")
    A(f"v_cvt_pk_bf16_f32 v{vQ1+2}, v{vM}, 0")
    A("s_mov_b64 exec, -1")
    kread(vKc, 1, 1)
    A("s_mov_b64 exec, -1")
    A("s_nop 1")
    qk(0, 0)
    A(f"s_mov_b32 s{sCNT}, 0")
    lab(f"{P}_loop")
    for i in range(TPS):
        st = i & 1
        if i == TPS - 2 and 'nobar' not in EXP:
            A("s_waitcnt vmcnt(0)")
            A("s_barrier")
            dma()
        if 'nolds' not in EXP:
            if i + 2 < TPS: kread(vKc, i + 2, st)
            else: kread(vKn, i + 2 - TPS, st)
            vread(i, st)
            A("s_waitcnt lgkmcnt(4)")
        S = vS + st * 16
        Sn = vS + (st ^ 1) * 16
        M = (lambda x: None) if 'nomfma' in EXP else A
        E = (lambda r: A(f"v_exp_f32 v{r}, v{r}"))
        CV = (lambda j: A(f"v_cvt_pk_bf16_f32 v{vP+j}, v{S+2*j}, v{S+2*j+1}"))
        M(f"v_mfma_f32_32x32x16_bf16 {vr(Sn,16)}, {vr(vK+(st^1)*8,4)}, {vr(vQ0,4)}, 0")
        if 'ilv' in EXP:
            E(S); E(S+1); E(S+2); E(S+3); CV(0); E(S+4); E(S+5); CV(1); E(S+6); E(S+7); CV(2)
            M(f"v_mfma_f32_32x32x16_bf16 {vr(Sn,16)}, {vr(vK+(st^1)*8+4,4)}, {vr(vQ1,4)}, {vr(Sn,16)}")
            E(S+8); E(S+9); CV(3); E(S+10); E(S+11); CV(4)
            if 'nolds' not in EXP: A("s_waitcnt lgkmcnt(0)")
            M(f"v_mfma_f32_32x32x16_bf16 {vr(vO,16)}, {vr(vV+st*8,4)}, {vr(vP,4)}, {vr(vO,16)}")
            E(S+12); E(S+13); CV(5); E(S+14); E(S+15); CV(6); A("s_nop 0"); CV(7)
        else:
            for r in range(0, 8): E(S+r)
            M(f"v_mfma_f32_32x32x16_bf16 {vr(Sn,16)}, {vr(vK+(st^1)*8+4,4)}, {vr(vQ1,4)}, {vr(Sn,16)}")
            for j in range(4): CV(j)
            for r in range(8, 16): E(S+r)
            if 'nolds' not in EXP: A("s_waitcnt lgkmcnt(0)")
            M(f"v_mfma_f32_32x32x16_bf16 {vr(vO,16)}, {vr(vV+st*8,4)}, {vr(vP,4)}, {vr(vO,16)}")
            for j in range(4, 8): CV(j)
        if i == TPS - 1:
            A(f"v_mov_b32 v{vKc}, v{vKn}")
            A(f"v_add_u32 v{vVc}, s{sBN}, v{vVa}")
            A(f"v_add_u32 v{vVc}, {HALF}, v{vVc}")
            A(f"s_add_u32 s{sBN}, s{sBN}, {BUFB}")
            A(f"s_cmp_ge_u32 s{sBN}, {NBUF*BUFB}")
            A(f"s_cselect_b32 s{sBN}, 0, s{sBN}")
            A(f"v_add_u32 v{vKn}, s{sBN}, v{vLa}")
        else:
            A("s_nop 1")
        M(f"v_mfma_f32_32x32x16_bf16 {vr(vO,16)}, {vr(vV+st*8+4,4)}, {vr(vP+4,4)}, {vr(vO,16)}")
    A(f"s_add_u32 s{sCNT}, s{sCNT}, 1")
    A(f"s_cmp_lt_u32 s{sCNT}, {NSTG}")
    A(f"s_cbranch_scc1 {P}_loop")
    A("s_nop 15")
    get_l()
    A(f"v_max3_f32 v{vT+1}, abs(v{vO}), abs(v{vO+1}), abs(v{vO+2})")
    for k in range(3, 11, 2):
        A(f"v_max3_f32 v{vT+1}, v{vT+1}, abs(v{vO+k}), abs(v{vO+k+1})")
    A(f"v_max_f32 v{vT+1}, v{vT+1}, abs(v{vO+11})")
    A(f"s_mov_b32 s{sT0}, 0x7b800000")
    A(f"s_mov_b32 s{sT1}, 0x71800000")
    A("s_waitcnt lgkmcnt(0)")
    A(f"v_cmp_ngt_f32 vcc, s{sT0}, v{vT+1}")
    A(f"v_cmp_ngt_f32 {sr(sAH,2)}, s{sT1}, v{vM+1}")
    A(f"s_or_b64 vcc, vcc, {sr(sAH,2)}")
    A(f"s_cbranch_vccnz {P}_fallback")
    lab(f"{P}_store")
    store_o(sHD, sQT, sOS)
    if 'nopf' not in EXP:
        A("s_and_b32 s8, s2, 4")
        A("s_cmp_eq_u32 s8, 0")
        A("s_cselect_b32 s8, s4, s6")
        A("s_cselect_b32 s9, s5, s7")
        A("s_and_b32 s9, s9, 0xffff")
        A("s_mov_b32 s10, 819200")
        A("s_mov_b32 s11, 0x00020000")
        A("s_lshr_b32 s12, s2, 3")
        A("s_mul_i32 s12, s12, 25600")
        A(f"s_lshl_b32 s13, s{sWV}, 10")
        A("s_add_u32 s12, s12, s13")
        for j in range(4):
            A(f"buffer_load_dwordx4 {vr(vPF,4)}, v{vLa}, s[8:11], s12 offen")
            A("s_add_u32 s12, s12, 8192")

    if 'noA' not in EXP:
        A("s_nop 1")
        a_unit()
    if 'stamp' in EXP:
        A("s_memtime s[68:69]")
        A("s_memrealtime s[70:71]")
        A("s_getreg_b32 s72, hwreg(HW_REG_HW_ID)")
        A("s_getreg_b32 s73, hwreg(HW_REG_XCC_ID)")
        A("s_waitcnt lgkmcnt(0)")
        for j, sg in enumerate((60,61,62,63,68,69,70,71,72,73)):
            A(f"v_mov_b32 v{20+j}, s{sg}")
        A(f"s_mul_i32 s74, s2, {NWAVE}")
        A(f"s_add_u32 s74, s74, s{sWV}")
        A("s_lshl_b32 s74, s74, 6")
        A("s_add_u32 s74, s74, 0x3000000")
        A("v_mov_b32 v30, 0")
        A("s_mov_b64 exec, 1")
        A("buffer_store_dwordx4 v[20:23], v30, s[64:67], s74 offen")
        A("buffer_store_dwordx4 v[24:27], v30, s[64:67], s74 offen offset:16")
        A("buffer_store_dwordx2 v[28:29], v30, s[64:67], s74 offen offset:32")
    A("s_endpgm")

    lab(f"{P}_fallback")
    A(f"v_mov_b32 v{vQ1+2}, 0")
    A(f"v_mov_b32 v{vM}, 0xff800000")
    for r in range(16): A(f"v_mov_b32 v{vO+r}, 0")
    A(f"s_mul_i32 s{sDO}, s{sHD}, {HEAD_B}")
    A(f"s_mov_b32 s{sCNT}, 0")
    lab(f"{P}_fbloop")
    gload_kv(0, sDO)
    A("s_waitcnt vmcnt(0)")
    qk(0, 0)
    A("s_nop 15")
    rowmax(vS, 16, vM+2, vT)
    A(f"v_max_f32 v{vM+2}, v{vM+2}, v{vM}")
    A(f"v_sub_f32 v{vM+3}, v{vM}, v{vM+2}")
    A(f"v_exp_f32 v{vM+3}, v{vM+3}")
    A(f"v_mov_b32 v{vM}, v{vM+2}")
    for r in range(16): A(f"v_mul_f32 v{vO+r}, v{vO+r}, v{vM+3}")
    for r in range(16):
        A(f"v_sub_f32 v{vS+r}, v{vS+r}, v{vM}")
        A(f"v_exp_f32 v{vS+r}, v{vS+r}")
    A("s_nop 0")
    for j in range(8): A(f"v_cvt_pk_bf16_f32 v{vP+j}, v{vS+2*j}, v{vS+2*j+1}")
    A("s_nop 1")
    A(f"v_mfma_f32_32x32x16_bf16 {vr(vO,16)}, {vr(vV,4)}, {vr(vP,4)}, {vr(vO,16)}")
    A(f"v_mfma_f32_32x32x16_bf16 {vr(vO,16)}, {vr(vV+4,4)}, {vr(vP+4,4)}, {vr(vO,16)}")
    A(f"s_add_u32 s{sDO}, s{sDO}, {TILE_B}")
    A(f"s_add_u32 s{sCNT}, s{sCNT}, 1")
    A(f"s_cmp_lt_u32 s{sCNT}, 64")
    A("s_nop 15")
    A(f"s_cbranch_scc1 {P}_fbloop")
    get_l()
    A("s_waitcnt lgkmcnt(0)")
    A(f"s_branch {P}_store")
    lab(f"{P}_end")
    A("s_endpgm")
    kernel_desc(name, NV, 80)
    return NBUF * BUFB, NB, NWAVE * 64

def main():
    k1, k2, k3 = "qkv_kernel", "att_kernel", "out_kernel"
    l1, g1, b1 = gemm("qkv", k1)
    l2, g2, b2 = attn(k2)
    l3, g3, b3 = gemm("out", k3)
    hdr = open(f"cdna_kernels/{NAME}.s.ref").read().split("; Override launch")[0]
    out = hdr
    out += f"; @launch kernel={k1} grid=({g1},1,1) block=({b1},1,1) lds={l1}\n"
    out += f"; @launch kernel={k2} grid=({g2},1,1) block=({b2},1,1) lds={l2}\n"
    out += f"; @launch kernel={k3} grid=({g3},1,1) block=({b3},1,1) lds={l3}\n"
    out += '.amdgcn_target "amdgcn-amd-amdhsa--gfx950"\n.text\n'
    out += "\n".join(L) + "\n"
    out += '.section .rodata,"a"\n.p2align 6\n' + "\n".join(DESC) + "\n"
    dst = sys.argv[1] if len(sys.argv) > 1 else f"cdna_kernels/{NAME}.s"
    open(dst, "w").write(out)
main()
```
